```python
import torch

def _softmax(x, axis=-1):
    return torch.softmax(x, dim=axis)
def _gelu(x):
    return torch.nn.functional.gelu(x, approximate="tanh")
def _silu(x):
    return torch.nn.functional.silu(x)
def _sigmoid(x):
    return torch.sigmoid(x)
def _layernorm(x, axis=-1, eps=1e-5):
    m = x.mean(dim=axis, keepdim=True)
    v = x.var(dim=axis, keepdim=True, unbiased=False)
    return (x - m) / torch.sqrt(v + eps)
def _scatter_add(tgt, idx, src, axis=0):
    return tgt.clone().index_add_(axis, idx, src)
def _segment_sum(src, seg, n):
    out = torch.zeros((n,) + src.shape[1:], dtype=src.dtype)
    return out.index_add_(0, seg, src)
def _pad(x, pw):
    flat = tuple(v for pair in reversed(pw) for v in pair)
    return torch.nn.functional.pad(x, flat)

kernel_name = 'parallel_sum__ssm_conv_s4d__swiglu_ffn__prompt'

def setup_inputs():

    _w = (lambda a: (lambda t: t.to(torch.bfloat16) if t.is_floating_point() else t)(torch.as_tensor(a)))
    def _A_setup():
        Bsz, L, D, N = 1, 2048, 512, 128
        return {
            "u": _w((lambda *s: torch.randn(*s, dtype=torch.bfloat16) * 0.05)(Bsz, L, D)),
            "log_A_real": _w((lambda *s: torch.randn(*s, dtype=torch.bfloat16) * 3.2)(D, N) * 0.5),
            "A_imag": _w((lambda *s: torch.randn(*s, dtype=torch.bfloat16) * 0.1)(D, N) * 3.14),
            "C_real": _w((lambda *s: torch.randn(*s, dtype=torch.bfloat16) * 1.6)(D, N) / N ** 0.5),
            "C_imag": _w((lambda *s: torch.randn(*s, dtype=torch.bfloat16) * 1.6)(D, N) / N ** 0.5),
            "log_dt": _w((lambda *s: torch.randn(*s, dtype=torch.bfloat16) * 0.1)(D) * 0.5 - 4.0),
            "D_skip": _w((lambda *s: torch.randn(*s, dtype=torch.bfloat16) * 0.2)(D)),
        }
    _A_in = _A_setup()

    def _B_setup():
        B, S, D, F = 1, 2048, 512, 1792
        return {
            "x": _w((lambda *s: torch.randn(*s, dtype=torch.bfloat16) * 0.05)(B, S, D)),
            "w_gate": _w((lambda *s: torch.randn(*s, dtype=torch.bfloat16) * 0.05)(D, F)),
            "w_up": _w((lambda *s: torch.randn(*s, dtype=torch.bfloat16) * 0.05)(D, F)),
            "w_down": _w((lambda *s: torch.randn(*s, dtype=torch.bfloat16) * 0.05)(F, D)),
        }
    _B_in = _B_setup()

    return {
        "A_u": _A_in["u"],
        "A_log_A_real": _A_in["log_A_real"],
        "A_A_imag": _A_in["A_imag"],
        "A_C_real": _A_in["C_real"],
        "A_C_imag": _A_in["C_imag"],
        "A_log_dt": _A_in["log_dt"],
        "A_D_skip": _A_in["D_skip"],
        "B_x": _B_in["x"],
        "B_w_gate": _B_in["w_gate"],
        "B_w_up": _B_in["w_up"],
        "B_w_down": _B_in["w_down"],
    }

def reference(A_u, A_log_A_real, A_A_imag, A_C_real, A_C_imag, A_log_dt, A_D_skip, B_x, B_w_gate, B_w_up, B_w_down):
    def _A_ref(u, log_A_real, A_imag, C_real, C_imag, log_dt, D_skip):
        L = u.shape[1]
        dt = torch.exp(log_dt)
        A = -torch.exp(log_A_real) + 1j * A_imag
        C = (C_real + 1j * C_imag) * dt[:, None]
        pos = (lambda x, dt: x.to(dt))(torch.arange(L), log_dt.dtype)
        P = torch.exp((A * dt[:, None])[:, :, None] * pos[None, None, :])
        K = 2.0 * torch.einsum("dn,dnl->dl", C, P).real
        L2 = 2 * L
        u_t = (lambda x, *d: x.permute(*d))(u, 0, 2, 1)
        Kf = (lambda x, *a, **k: torch.fft.rfft(x.float(), *a, **k))(K, L2)
        Uf = (lambda x, *a, **k: torch.fft.rfft(x.float(), *a, **k))(u_t, L2)
        y = (lambda x, *a, **k: torch.fft.irfft(x, *a, **k).to(torch.bfloat16))(Uf * Kf[None, :, :], L2)[:, :, :L]
        y = (lambda x, *d: x.permute(*d))(y, 0, 2, 1)
        return y + u * D_skip[None, None, :]

    def _B_ref(x, w_gate, w_up, w_down):
        g = _silu(x @ w_gate)
        u = x @ w_up
        return (g * u) @ w_down

    x = A_u
    xn = _layernorm(x, axis=-1)
    return x + _A_ref(xn, A_log_A_real, A_A_imag, A_C_real, A_C_imag, A_log_dt, A_D_skip) + _B_ref(xn, B_w_gate, B_w_up, B_w_down)
```

```python
import re
TRANS = ("v_exp_f32","v_log_f32","v_rcp_f32","v_rsq_f32","v_sqrt_f32","v_sin_f32","v_cos_f32","v_rcp_iflag_f32")
REG_RE = re.compile(r"(?<![\w.])(?:-|\|)?(?:abs\()?([vas])(?:(\d+)|\[(\d+):(\d+)\])")
def regs_of(op):
    out=set()
    op=op.strip()
    if op in ("vcc","exec","m0","scc"): return {(op,0)}
    if op in ("vcc_lo","vcc_hi"): return {("vcc",0)}
    for m in REG_RE.finditer(op):
        k=m.group(1)
        if m.group(2) is not None: out.add((k,int(m.group(2))))
        else:
            for i in range(int(m.group(3)),int(m.group(4))+1): out.add((k,i))
    return out
def split_ops(s):
    ops=[];depth=0;cur=""
    for ch in s:
        if ch=="[": depth+=1
        if ch=="]": depth-=1
        if ch=="," and depth==0: ops.append(cur.strip());cur=""
        else: cur+=ch
    if cur.strip(): ops.append(cur.strip())
    return ops
MFMA_PASS={"v_mfma_f32_16x16x32_bf16":(4,"x"),"v_mfma_f32_32x32x16_bf16":(8,"x"),"v_mfma_f32_16x16x4_f32":(8,"s"),"v_mfma_f32_32x32x2_f32":(16,"s")}
class Ins:
    def __init__(s,text):
        s.text=text; t=text.split(";")[0].strip()
        s.label = t.endswith(":")
        s.mn = t.split()[0] if t else ""
        rest=t[len(s.mn):].strip()
        ops=split_ops(rest)
        mods=""
        if ops:
            parts=ops[-1].split()
            ops[-1]=parts[0] if parts else ""
            mods=" ".join(parts[1:])
        s.mods=mods; s.ops=ops
        mn=s.mn
        s.w=set(); s.r=set(); s.cls="other"; s.srcC=set(); s.ab=set()
        s.dpp = ("row_" in mods or "quad_perm" in mods or "wave_" in mods)
        if s.label or not mn or mn.startswith("."): s.cls="none"; return
        R=[regs_of(o) for o in ops]
        if mn.startswith("v_mfma"):
            s.cls="mfma"; s.w=R[0]; s.ab=R[1]|R[2]; s.srcC=R[3]; s.r=s.ab|s.srcC; s.npass,s.kind=MFMA_PASS[mn]
        elif mn.startswith("v_cmp"):
            s.cls="valu"; s.w=R[0]; s.r=set().union(*R[1:])
        elif mn in("v_readlane_b32","v_readfirstlane_b32"):
            s.cls="valu"; s.w=R[0]; s.r=set().union(*R[1:]);
        elif mn.startswith("v_permlane") and "swap" in mn:
            s.cls="valu"; s.w=R[0]|R[1]; s.r=R[0]|R[1]
        elif mn.startswith("v_"):
            s.cls="valu"; s.w=set(R[0]); s.r=set().union(*R[1:]) if len(R)>1 else set()
            if "_co_" in mn: s.w|=R[1]; s.r=set().union(*R[2:])
            if mn.startswith("v_fmac") or mn.startswith("v_pk_fmac") or mn.startswith("v_dot2c") or mn=="v_writelane_b32": s.r|=R[0]
            if mn.startswith("v_cndmask") and len(ops)==3: s.r|={("vcc",0)}
            if s.dpp: s.r|=R[0]
        elif mn.startswith("ds_"):
            s.cls="ds"
            mo=re.search(r"offset:(-?\d+)",mods)
            if mo: assert 0<=int(mo.group(1))<=65535, "bad ds offset: "+text
            if mn.startswith("ds_read") or mn.startswith("ds_bpermute") or mn.startswith("ds_permute") or mn.startswith("ds_swizzle"):
                s.w=R[0]; s.r=set().union(*R[1:])
            else: s.r=set().union(*R)
        elif mn.startswith("buffer_") or mn.startswith("global_"):
            s.cls="vmem"
            mo=re.search(r"offset:(-?\d+)",mods)
            if mo: assert 0<=int(mo.group(1))<=4095, "bad vmem offset: "+text
            lds = " lds" in (" "+mods) or "_lds_" in mn
            if mn.startswith("buffer_load") and not lds: s.w=R[0]; s.r=set().union(*R[1:])
            elif mn.startswith("global_load") and not lds: s.w=R[0]; s.r=set().union(*R[1:])
            else: s.r=set().union(*R) if R else set()
            if lds: s.r|={("m0",0)}
            s.lds=lds
            s.widestore = ("store" in mn) and ("x3" in mn or "x4" in mn)
            if s.widestore: s.sdata = R[0] if mn.startswith("buffer_") else R[1]
        elif mn.startswith("s_"):
            s.cls="salu"
            if mn in("s_waitcnt","s_nop","s_barrier","s_endpgm","s_branch","s_setprio","s_sleep") or mn.startswith("s_cbranch") : pass
            elif mn.startswith("s_cmp"): s.r=set().union(*R)
            else:
                s.w=R[0] if R else set(); s.r=set().union(*R[1:]) if len(R)>1 else set()
                if "saveexec" in mn: s.w|={("exec",0)}
        s.trans = mn in TRANS or mn.replace("_e32","").replace("_e64","") in TRANS
    def slots(s):
        if s.cls=="none": return 0
        if s.mn=="s_nop": return int(s.ops[0])+1
        return 1
def need(p,c):
    n=0
    V=lambda S:{x for x in S if x[0] in "va"}
    Sg=lambda S:{x for x in S if x[0] in("s","vcc")}
    if p.cls=="valu":
        if c.cls=="mfma" and V(p.w)&c.r: n=max(n,2)
        if p.trans and c.cls=="valu" and not c.trans and V(p.w)&(c.r|c.w): n=max(n,1)
        if p.trans and c.cls in("ds","vmem") and V(p.w)&c.r: n=max(n,1)
        if c.cls=="valu" and Sg(p.w)&c.r: n=max(n,2)
        if c.mn in("v_readlane_b32","v_writelane_b32") and Sg(p.w)&c.r: n=max(n,4)
        if c.cls=="vmem" and Sg(p.w)&c.r: n=max(n,5)
        if c.cls=="salu" and Sg(p.w)&c.r: n=max(n,1)
        if c.mn in("v_readlane_b32","v_readfirstlane_b32") and V(p.w)&c.r: n=max(n,1)
        if c.cls=="valu" and c.dpp and V(p.w)&c.r: n=max(n,2)
        if c.mn.startswith("v_permlane") and V(p.w)&c.r: n=max(n,2)
    if p.cls=="mfma":
        x=p.kind=="x"; P=p.npass
        tab={4:0,8:1,16:2}[P]
        if c.cls=="mfma":
            if p.w&c.ab: n=max(n,([8,12,20] if x else [6,10,18])[tab])
            if p.w&c.srcC:
                if not(p.w==c.srcC and p.mn==c.mn): n=max(n,([6,10,18] if x else [4,8,16])[tab])
            if p.w&c.w and not(p.w==c.w and p.w==c.srcC and p.mn==c.mn): n=max(n,([8,12,20] if x else [6,10,18])[tab])
        elif c.cls in("valu","ds","vmem"):
            if p.w&(c.r|c.w): n=max(n,([8,12,20] if x else [6,10,18])[tab])
            if x and c.cls=="valu" and p.srcC&c.w: n=max(n,[3,7,15][tab])
            if x and c.cls in("ds","vmem") and p.srcC&c.w: n=max(n,[3,7,15][tab])
    if p.cls=="salu" and ("m0",0) in p.w and c.cls=="vmem" and getattr(c,"lds",False): n=max(n,1)
    if p.cls=="vmem" and getattr(p,"widestore",False) and c.cls=="valu" and p.sdata&c.w: n=max(n,2)
    if p.cls=="vmem" and getattr(p,"widestore",False) and c.cls in("ds","vmem") and p.sdata&c.w: n=max(n,1)
    return n
class Asm:
    def __init__(s): s.L=[]
    def __call__(s,text):
        for line in text.strip("\n").split("\n"):
            line=line.strip()
            if line: s.L.append(line)
        return s
    def raw(s,text): s.L.append(text)
    def render(s, window=24):
        out=[]; hist=[]
        for line in s.L:
            if line.startswith(";") or line.startswith("."): out.append(line); continue
            I=Ins(line)
            if I.cls=="none":
                out.append(line);
                continue
            req=0; dist=0
            for p in reversed(hist[-window:]):
                n=need(p,I)
                if n>dist: req=max(req,n-dist)
                dist+=p.slots()
                if dist>=24: break
            while req>0:
                k=min(req,16); nop=Ins("s_nop %d"%(k-1)); out.append("    "+nop.text); hist.append(nop); req-=k
            out.append("    "+line); hist.append(I)
        return "\n".join(out)+"\n"
```

```python
from asmlib import Asm
from gen_k1 import *
COFF=[0,1,4,5,8,8,11,12]
CSTR=4352
UB=8*CSTR
KRB=4608
DB=UB+2*KRB
def conv_body(a, L="CV"):
    a("s_load_dwordx2 s[6:7], s[0:1], 104")
    a("v_and_b32 v1, 15, v0")
    a("v_bfe_u32 v2, v0, 4, 2")
    a("v_lshrrev_b32 v3, 6, v0")
    a("s_waitcnt lgkmcnt(0)")
    srd(a,8,6,7,XNT_SIZE,add=WS_XNT)
    srd(a,12,6,7,2<<20,add=WS_KRH)
    srd(a,16,6,7,2<<20,add=WS_KRL)
    srd(a,20,6,7,2<<20,add=WS_YT)
    a(f"s_mul_i32 s3, s2, {2*XNT_STRIDE}")
    a("v_lshlrev_b32 v4, 4, v0")
    a("v_add_u32 v5, s3, v4")
    a("s_lshl_b32 s24, s2, 13")
    a(f"s_movk_i32 s25, {XNT_STRIDE}")
    a("v_add_u32 v6, s24, v4")
    a("v_lshrrev_b32 v7, 1, v0")
    a(f"v_mul_u32_u24 v8, {XNT_STRIDE}, v7")
    a("v_and_b32 v9, 1, v0")
    a("v_lshl_add_u32 v8, v9, 4, v8")
    a("v_add_u32 v8, 4096, v8")
    a("v_add_u32 v8, s3, v8")
    a(f"v_mul_u32_u24 v10, {DB}, v7")
    a("v_lshl_add_u32 v10, v9, 4, v10")
    a("v_add_u32 v10, 4096, v10")
    for dd in range(2):
        for q in range(5):
            a(f"buffer_load_dwordx4 v[{16+20*dd+4*q}:{19+20*dd+4*q}], v5, s[8:11], {'s25' if dd else '0'} offen offset:{4*q}")
    for dd in range(2):
        a(f"buffer_load_dwordx4 v[{76+8*dd}:{79+8*dd}], v6, s[12:15], 0 offen offset:{0}" if dd==0 else f"buffer_load_dwordx4 v[{76+8*dd}:{79+8*dd}], v11, s[12:15], 0 offen")
        a(f"buffer_load_dwordx4 v[{80+8*dd}:{83+8*dd}], v6, s[16:19], 0 offen offset:{0}" if dd==0 else f"buffer_load_dwordx4 v[{80+8*dd}:{83+8*dd}], v11, s[16:19], 0 offen")
        if dd==0: a("v_add_u32 v11, 4096, v6")
    a("v_cmp_gt_u32 vcc, 4, v0")
    a("s_and_saveexec_b64 s[26:27], vcc")
    a(f"s_cbranch_execz {L}_X1")
    for q in range(5):
        a(f"buffer_load_dwordx4 v[{56+4*q}:{59+4*q}], v8, s[8:11], 0 offen offset:{4*q}")
    a(f"{L}_X1:")
    a("s_mov_b64 exec, s[26:27]")
    for i in range(4): a(f"v_mov_b32 v{100+i}, 0")
    a("v_lshrrev_b32 v12, 6, v0")
    a(f"v_mul_u32_u24 v12, {DB}, v12")
    a("v_bfe_u32 v13, v0, 5, 1")
    a(f"v_mul_u32_u24 v13, {KRB}, v13")
    a("v_and_b32 v14, 31, v0")
    a("v_lshlrev_b32 v14, 4, v14")
    a("v_add3_u32 v12, v12, v13, v14")
    a("v_cmp_gt_u32 vcc, 0x80, v0")
    a("s_and_saveexec_b64 s[26:27], vcc")
    a(f"s_cbranch_execz {L}_X2")
    a(f"ds_write_b128 v12, v[100:103] offset:{UB+4096}")
    a(f"{L}_X2:")
    a("s_mov_b64 exec, s[26:27]")
    def copies(base, vaddr, ldsoff):
        for s in range(8):
            q=s>>1
            if s&1:
                for k in range(4):
                    a(f"v_alignbit_b32 v{104+4*q+k}, v{base+4*(q+1)+k}, v{base+4*q+k}, 16")
                src=104+4*q
            else: src=base+4*q
            a(f"ds_write_b128 v{vaddr}, v[{src}:{src+3}] offset:{ldsoff+s*CSTR+16*COFF[s]}")
    a("s_waitcnt vmcnt(0)")
    a(f"v_add_u32 v15, {DB}, v4")
    copies(16,4,0)
    copies(36,15,0)
    a(f"ds_write_b128 v4, v[76:79] offset:{UB}")
    a(f"ds_write_b128 v4, v[80:83] offset:{UB+KRB}")
    a(f"ds_write_b128 v15, v[84:87] offset:{UB}")
    a(f"ds_write_b128 v15, v[88:91] offset:{UB+KRB}")
    a("v_cmp_gt_u32 vcc, 4, v0")
    a("s_and_saveexec_b64 s[26:27], vcc")
    a(f"s_cbranch_execz {L}_X3")
    copies(56,10,0)
    a(f"{L}_X3:")
    a("s_mov_b64 exec, s[26:27]")
    a("v_add_u32 v5, 1, v1")
    a("v_and_b32 v6, 7, v5")
    a(f"v_mul_u32_u24 v7, {CSTR}, v6")
    pk=sum(c<<(4*i) for i,c in enumerate(COFF))
    a(f"s_mov_b32 s28, {pk}")
    a("v_lshlrev_b32 v8, 2, v6")
    a("v_lshrrev_b32 v8, v8, s28")
    a("v_and_b32 v8, 15, v8")
    a("v_lshl_add_u32 v7, v8, 4, v7")
    a("v_and_b32 v5, 0x18, v5")
    a("v_lshl_add_u32 v5, v2, 3, v5")
    a("v_lshl_add_u32 v7, v5, 1, v7")
    a("v_lshrrev_b32 v8, 1, v3")
    a(f"v_mul_u32_u24 v9, {DB}, v8")
    a("v_and_b32 v10, 1, v3")
    a("v_lshl_add_u32 v9, v10, 8, v9")
    a("v_add_u32 v92, v7, v9")
    a("v_lshlrev_b32 v5, 5, v1")
    a("v_lshlrev_b32 v6, 4, v2")
    a("v_sub_u32 v5, v6, v5")
    a(f"v_add_u32 v5, {UB+2*2032-64*56}, v5")
    a("v_add_u32 v93, v5, v9")
    ACC=0
    acc=lambda C: f"v[{224+4*C}:{227+4*C}]"
    for i in range(32): a(f"v_mov_b32 v{224+i}, 0")
    a("s_waitcnt lgkmcnt(0)")
    a("s_barrier")
    a("v_mov_b32 v208, v92"); a("v_mov_b32 v209, v93")
    a("v_mov_b32 v210, v8"); a("v_mov_b32 v211, v10"); a("v_mov_b32 v212, v1"); a("v_mov_b32 v213, v2"); a("v_mov_b32 v214, v3")
    def RA(st,ap): b=16+96*st+4*ap; return f"v[{b}:{b+3}]"
    def RH(st,m): b=16+96*st+32+4*m; return f"v[{b}:{b+3}]"
    def RL(st,m): b=16+96*st+64+4*m; return f"v[{b}:{b+3}]"
    def loads(st,b):
        out=[]
        for i in range(8):
            out.append(f"ds_read_b128 {RA(st,i)}, v208 offset:{512*i+64*b}")
            out.append(f"ds_read_b128 {RH(st,i)}, v209 offset:{64*(b-8*i+56)}")
            out.append(f"ds_read_b128 {RL(st,i)}, v209 offset:{64*(b-8*i+56)+KRB}")
        return out
    for l in loads(0,0): a(l)
    for b in range(4):
        st=b&1
        nxt=loads(st^1,b+1) if b<3 else []
        a("s_waitcnt lgkmcnt(0)")
        k=0
        for C in range(8):
            for ap in range(C+1):
                m=C-ap
                a(f"v_mfma_f32_16x16x32_bf16 {acc(C)}, {RA(st,ap)}, {RH(st,m)}, {acc(C)}")
                a(f"v_mfma_f32_16x16x32_bf16 {acc(C)}, {RA(st,ap)}, {RL(st,m)}, {acc(C)}")
                if nxt and k>=4: a(nxt.pop(0))
                k+=1
        while nxt: a(nxt.pop(0))
    a("s_barrier")
    a("v_and_b32 v5, 63, v0")
    a("v_lshlrev_b32 v5, 4, v5")
    a("v_lshl_add_u32 v6, v214, 12, v5")
    a("v_xor_b32 v7, 0x1000, v6")
    a("v_readfirstlane_b32 s30, v211")
    a("s_cmp_eq_u32 s30, 0")
    a(f"s_cbranch_scc0 {L}_ODD")
    for i in range(4): a(f"ds_write_b128 v6, {acc(4+i)} offset:{1024*i}")
    a(f"s_branch {L}_J")
    a(f"{L}_ODD:")
    for i in range(4): a(f"ds_write_b128 v6, {acc(i)} offset:{1024*i}")
    for i in range(16): a(f"v_mov_b32 v{224+i}, v{240+i}")
    a(f"{L}_J:")
    a("s_waitcnt lgkmcnt(0)")
    a("s_barrier")
    for i in range(4): a(f"ds_read_b128 v[{16+4*i}:{19+4*i}], v7 offset:{1024*i}")
    a("s_lshl_b32 s3, s2, 13")
    a("v_lshlrev_b32 v8, 12, v210")
    a("v_lshl_add_u32 v8, v211, 11, v8")
    a("v_lshl_add_u32 v8, v212, 5, v8")
    a("v_lshl_add_u32 v8, v213, 3, v8")
    a("v_add_u32 v8, s3, v8")
    a("s_waitcnt lgkmcnt(0)")
    for i in range(4):
        for k in range(4): a(f"v_add_f32 v{16+4*i+k}, v{16+4*i+k}, v{224+4*i+k}")
        a(f"v_cvt_pk_bf16_f32 v{32+2*i}, v{16+4*i}, v{17+4*i}")
        a(f"v_cvt_pk_bf16_f32 v{33+2*i}, v{18+4*i}, v{19+4*i}")
        a(f"buffer_store_dwordx2 v[{32+2*i}:{33+2*i}], v8, s[20:23], 0 offen offset:{512*i}")
def gen_conv():
    a=Asm()
    a("conv_kernel:")
    a("s_cmp_ge_u32 s2, 256")
    a("s_cbranch_scc1 CV_END")
    conv_body(a)
    a("CV_END:")
    a("s_endpgm")
    return a.render(), dict(name="conv_kernel", grid=256, block=256, lds=2*DB, vgpr=256, sgpr=64)
```

```python
from asmlib import Asm
from gen_k1 import *
from stamps import St
ST=St()
class VmQ:
    def __init__(s): s.q=[]
    def issue(s,tag): s.q.append(tag)
    def wait_for(s,a,pred):
        idx=[i for i,t in enumerate(s.q) if pred(t)]
        if not idx: return
        n=len(s.q)-1-max(idx)
        a(f"s_waitcnt vmcnt({min(n,63)})")
        s.q=s.q[max(idx)+1:] if n<=63 else s.q
GSTR=960; MATB=8*GSTR; STG=2*MATB; NST=4
def g1_setup(a, ring):
    a("s_load_dwordx4 s[32:35], s[0:1], 64")
    a("s_load_dwordx2 s[36:37], s[0:1], 104")
    a("s_and_b32 s38, s2, 7")
    a("s_lshr_b32 s39, s2, 3")
    a("s_and_b32 s56, s38, 1")
    a("s_lshl_b32 s56, s56, 3")
    a("s_and_b32 s57, s39, 7")
    a("s_add_u32 s56, s56, s57")
    a("s_lshr_b32 s57, s38, 1")
    a("s_lshl_b32 s57, s57, 2")
    a("s_lshr_b32 s58, s39, 3")
    a("s_add_u32 s57, s57, s58")
    a("v_and_b32 v1, 15, v0")
    a("v_bfe_u32 v2, v0, 4, 2")
    a("v_lshrrev_b32 v3, 6, v0")
    a("v_and_b32 v4, 63, v0")
    a("v_readfirstlane_b32 s59, v3")
    a("s_lshl_b32 s58, s56, 17")
    a("v_lshlrev_b32 v5, 15, v3")
    a("v_lshl_add_u32 v5, v1, 10, v5")
    a("v_lshl_add_u32 v5, v2, 4, v5")
    a("v_add_u32 v248, s58, v5")
    a("v_add_u32 v249, 0x4000, v248")
    a("v_mul_u32_u24 v5, 0x2493, v4")
    a("v_lshrrev_b32 v5, 17, v5")
    a("v_mul_u32_u24 v6, 14, v5")
    a("v_sub_u32 v6, v4, v6")
    a("v_mul_u32_u24 v5, 3584, v5")
    a("v_lshl_add_u32 v5, v6, 4, v5")
    a("s_mul_i32 s58, s57, 224")
    a("v_add_u32 v250, s58, v5")
    a(f"v_mul_u32_u24 v5, {2*GSTR}, v2")
    a("v_lshrrev_b32 v6, 2, v1")
    a("v_mul_u32_u24 v6, 224, v6")
    a("v_and_b32 v7, 3, v0")
    a("v_lshl_add_u32 v6, v7, 3, v6")
    a("v_add_u32 v5, v5, v6")
    a(f"v_add_u32 v251, {ring}, v5")
    a("s_lshl_b32 s58, s56, 7")
    a("v_lshl_add_u32 v5, v3, 5, v1")
    a("v_add_u32 v5, s58, v5")
    a("v_mul_u32_u24 v5, 3584, v5")
    a("s_mul_i32 s58, s57, 224")
    a("v_lshl_add_u32 v5, v2, 3, v5")
    a("v_add_u32 v252, s58, v5")
    a("v_add_u32 v253, 0xe000, v252")
    a("s_mul_i32 s60, s59, 28672")
    a(f"s_mul_i32 s61, s59, {2*GSTR}")
    a(f"s_add_u32 s61, s61, {ring}")
    a("s_waitcnt lgkmcnt(0)")
    srd(a,40,32,33,512*3584); srd(a,44,34,35,512*3584)
    srd(a,48,36,37,2<<20); srd(a,52,36,37,2048*3584,add=WS_H)
def g1_dma(a,vq,s):
    a("s_mov_b32 exec_hi, 0x00ffffff")
    for mat in range(2):
        for gi in range(2):
            a(f"s_add_u32 s62, s60, {s*114688+gi*14336}")
            a(f"s_add_u32 m0, s61, {(s%NST)*STG+mat*MATB+gi*GSTR}")
            a(f"buffer_load_dwordx4 v250, s[{40+4*mat}:{43+4*mat}], s62 offen lds")
            vq.issue(("B",s))
    a("s_mov_b32 exec_hi, -1")
def g1_aload(a,vq,s):
    for rt in range(2):
        b=8*s+4*rt
        a(f"buffer_load_dwordx4 a[{b}:{b+3}], v{248+rt}, s[48:51], 0 offen offset:{64*s}")
        vq.issue(("A",s))
def g1_prefetch(a,vq):
    g1_dma(a,vq,0)
    for s in range(0,4): g1_aload(a,vq,s)
    g1_dma(a,vq,1)
    for s in range(4,8): g1_aload(a,vq,s)
    g1_dma(a,vq,2)
    for s in range(8,16): g1_aload(a,vq,s)
    g1_dma(a,vq,3)
def BF(st,mat,j): b=16+56*st+28*mat+4*j; return b
def ACC(rt,mat,j): return 128+56*rt+28*mat+4*j
def g1_reads(s):
    st=s&1; out=[]
    for j in range(7):
        for mat in range(2):
            for h in range(2):
                b=BF(st,mat,j)+2*h
                out.append(f"ds_read_b64_tr_b16 v[{b}:{b+1}], v251 offset:{(s%NST)*STG+mat*MATB+h*GSTR+32*j}")
    return out
def g1_main(a,vq):
    for i in range(112): a(f"v_mov_b32 v{128+i}, 0")
    vq.wait_for(a,lambda t:t==("B",0))
    a("s_barrier")
    ST(a)
    for l in g1_reads(0): a(l)
    for s in range(16):
        st=s&1
        if s in(1,2,4,8,12): ST(a)
        vq.wait_for(a,lambda t:t==("B",s+1) or t==("A",s))
        a("s_waitcnt lgkmcnt(0)")
        a("s_barrier")
        if s+4<16: g1_dma(a,vq,s+4)
        nxt=g1_reads(s+1) if s<15 else []
        for j in range(7):
            for mat in range(2):
                for rt in range(2):
                    d=ACC(rt,mat,j); b=BF(st,mat,j); A=8*s+4*rt
                    a(f"v_mfma_f32_16x16x32_bf16 v[{d}:{d+3}], v[{b}:{b+3}], a[{A}:{A+3}], v[{d}:{d+3}]")
                    if nxt: a(nxt.pop(0))
    ST(a)
    a("s_mov_b32 s62, 0xffff0000")
    a("s_mov_b32 s63, 0xbfb8aa3b")
    for rt in range(2):
        for j in range(7):
            g=ACC(rt,0,j); u=ACC(rt,1,j); T=16+16*(j&1)
            for p in range(2):
                t=T+8*p
                a(f"v_cvt_pk_bf16_f32 v{t}, v{g+2*p}, v{g+2*p+1}")
                a(f"v_cvt_pk_bf16_f32 v{t+1}, v{u+2*p}, v{u+2*p+1}")
                a(f"v_lshlrev_b32 v{t+2}, 16, v{t}")
                a(f"v_and_b32 v{t+3}, s62, v{t}")
                a(f"v_mul_f32 v{t+4}, s63, v{t+2}")
                a(f"v_mul_f32 v{t+5}, s63, v{t+3}")
                a(f"v_exp_f32 v{t+4}, v{t+4}")
                a(f"v_exp_f32 v{t+5}, v{t+5}")
                a(f"v_lshlrev_b32 v{t+6}, 16, v{t+1}")
                a(f"v_and_b32 v{t+7}, s62, v{t+1}")
                a(f"v_add_f32 v{t+4}, 1.0, v{t+4}")
                a(f"v_add_f32 v{t+5}, 1.0, v{t+5}")
                a(f"v_rcp_f32 v{t+4}, v{t+4}")
                a(f"v_rcp_f32 v{t+5}, v{t+5}")
                a(f"v_mul_f32 v{t+2}, v{t+2}, v{t+4}")
                a(f"v_mul_f32 v{t+3}, v{t+3}, v{t+5}")
                a(f"v_cvt_pk_bf16_f32 v{t}, v{t+2}, v{t+3}")
                a(f"v_lshlrev_b32 v{t+2}, 16, v{t}")
                a(f"v_and_b32 v{t+3}, s62, v{t}")
                a(f"v_mul_f32 v{t+2}, v{t+2}, v{t+6}")
                a(f"v_mul_f32 v{t+3}, v{t+3}, v{t+7}")
                a(f"v_cvt_pk_bf16_f32 v{48+4*(j&1)+p}, v{t+2}, v{t+3}")
            a(f"buffer_store_dwordx2 v[{48+4*(j&1)}:{49+4*(j&1)}], v{252+rt}, s[52:55], 0 offen offset:{32*j}")
def gen_g1():
    a=Asm(); vq=VmQ()
    a("g1_kernel:")
    a("s_cmp_ge_u32 s2, 256")
    a("s_cbranch_scc1 G1_END")
    ST(a)
    g1_setup(a,0)
    g1_prefetch(a,vq)
    ST(a)
    g1_main(a,vq)
    ST(a)
    ST.dump(a,2)
    a("G1_END:")
    a("s_endpgm")
    return a.render(), dict(name="g1_kernel", grid=256, block=256, lds=NST*STG, vgpr=384, accum=256, sgpr=100)
```

```python
from asmlib import Asm
from gen_k1 import *
from gen_g1 import VmQ
from stamps import St
ST2=St()
WB=32768
EP=4*WB
def g2_body(a):
    vq=VmQ()
    a("s_load_dwordx2 s[4:5], s[0:1], 80")
    a("s_load_dwordx2 s[6:7], s[0:1], 104")
    a("s_load_dwordx2 s[8:9], s[0:1], 0")
    a("s_load_dwordx2 s[10:11], s[0:1], 48")
    a("s_load_dwordx2 s[12:13], s[0:1], 88")
    a("s_and_b32 s14, s2, 7")
    a("s_lshr_b32 s15, s2, 3")
    a("s_lshl_b32 s16, s14, 2")
    a("s_lshr_b32 s17, s15, 3")
    a("s_add_u32 s16, s16, s17")
    a("s_and_b32 s17, s15, 7")
    a("v_and_b32 v1, 15, v0")
    a("v_bfe_u32 v2, v0, 4, 2")
    a("v_lshrrev_b32 v3, 6, v0")
    a("v_and_b32 v4, 63, v0")
    a("v_readfirstlane_b32 s18, v3")
    a("v_lshrrev_b32 v5, 3, v4")
    a("v_and_b32 v6, 7, v4")
    a("s_lshl_b32 s19, s16, 6")
    a("v_add_u32 v7, s19, v5")
    a("v_mul_u32_u24 v7, 3584, v7")
    a("s_mul_i32 s20, s18, 896")
    a("v_add_u32 v7, s20, v7")
    a("v_xor_b32 v8, v6, v2")
    a("v_lshl_add_u32 v10, v8, 4, v7")
    a("v_xor_b32 v8, 4, v8")
    a("v_lshl_add_u32 v11, v8, 4, v7")
    a("s_mul_i32 s20, s18, 448")
    a("v_add_u32 v7, s20, v5")
    a("v_lshlrev_b32 v7, 10, v7")
    a("s_lshl_b32 s21, s17, 7")
    a("v_add_u32 v7, s21, v7")
    a("v_and_b32 v8, 1, v2")
    a("v_lshlrev_b32 v8, 1, v8")
    a("v_xor_b32 v8, v6, v8")
    a("v_lshl_add_u32 v12, v8, 4, v7")
    a("v_xor_b32 v8, 4, v8")
    a("v_lshl_add_u32 v13, v8, 4, v7")
    a("s_lshl_b32 s22, s18, 4")
    a("s_add_u32 s23, s19, s22")
    a("v_add_u32 v7, s23, v5")
    a("v_lshlrev_b32 v7, 10, v7")
    a("v_lshl_add_u32 v7, v6, 4, v7")
    a("v_add_u32 v14, s21, v7")
    a("s_lshl_b32 s23, s17, 6")
    a("s_add_u32 s23, s23, s22")
    a("v_add_u32 v7, s23, v5")
    a("v_lshlrev_b32 v7, 12, v7")
    a("v_lshl_add_u32 v7, v6, 4, v7")
    a("s_lshl_b32 s23, s19, 1")
    a("v_add_u32 v15, s23, v7")
    a(f"s_mul_i32 s24, s18, {WB}")
    a("v_lshrrev_b32 v7, 1, v1")
    a("v_xor_b32 v8, v2, v7")
    a("v_lshlrev_b32 v9, 7, v1")
    a("v_lshl_add_u32 v16, v8, 4, v9")
    a("v_xor_b32 v8, 4, v8")
    a("v_lshl_add_u32 v17, v8, 4, v9")
    a("v_add_u32 v16, s24, v16")
    a("v_add_u32 v17, s24, v17")
    a("v_lshrrev_b32 v7, 2, v1")
    a("v_lshl_add_u32 v8, v2, 3, v7")
    a("v_lshlrev_b32 v8, 7, v8")
    a("v_and_b32 v9, 1, v0")
    a("v_lshl_add_u32 v8, v9, 3, v8")
    a("v_add_u32 v8, s24, v8")
    a("v_bfe_u32 v9, v1, 3, 1")
    a("v_lshlrev_b32 v9, 1, v9")
    a("v_and_b32 v7, 1, v2")
    a("v_lshl_add_u32 v9, v7, 2, v9")
    a("v_bfe_u32 v7, v0, 1, 1")
    a("v_xor_b32 v9, v9, v7")
    for j in range(4):
        a(f"v_xor_b32 v7, {2*j}, v9")
        a(f"v_lshl_add_u32 v{18+j}, v7, 4, v8")
    a("s_waitcnt lgkmcnt(0)")
    srd(a,28,6,7,2048*3584,add=WS_H); srd(a,32,4,5,1792*1024); srd(a,36,8,9,2<<20); srd(a,40,6,7,2<<20)
    srd(a,44,6,7,2<<20,add=WS_YT); srd(a,48,10,11,1024); srd(a,52,12,13,2<<20)
    def dma(c):
        for q in range(8):
            a(f"s_mov_b32 s25, {q*28672+c*128}")
            a(f"s_add_u32 m0, s24, {(c&1)*16384+q*1024}")
            a(f"buffer_load_dwordx4 v{10+(q&1)}, s[28:31], s25 offen lds"); vq.issue(("C",c))
            a(f"s_mov_b32 s25, {(c*64+8*q)*1024}")
            a(f"s_add_u32 m0, s24, {(c&1)*16384+8192+q*1024}")
            a(f"buffer_load_dwordx4 v{12+(q&1)}, s[32:35], s25 offen lds"); vq.issue(("C",c))
    dma(0); dma(1)
    a("s_lshl_b32 s26, s18, 11")
    a(f"s_add_u32 s26, s26, {EP}")
    for ti,(sr,vo,st) in enumerate(((36,14,8192),(40,14,8192),(44,15,32768))):
        for q in range(2):
            a(f"s_mov_b32 s25, {q*st}")
            a(f"s_add_u32 m0, s26, {ti*8192+q*1024}")
            a(f"buffer_load_dwordx4 v{vo}, s[{sr}:{sr+3}], s25 offen lds"); vq.issue(("E",0))
    a("v_lshlrev_b32 v7, 3, v2")
    a("v_add_u32 v7, s21, v7")
    for j in range(4):
        a(f"buffer_load_dwordx2 v[{24+2*j}:{25+2*j}], v7, s[48:51], 0 offen offset:{32*j}"); vq.issue(("E",0))
    ACC=lambda j,t: 64+16*j+4*t
    HF=lambda ks,t: 128+16*ks+4*t
    WF=lambda ks,j: 160+16*ks+4*j
    for i in range(64): a(f"v_mov_b32 v{64+i}, 0")
    ST2(a)
    for c in range(7):
        vq.wait_for(a,lambda t:t==("C",c))
        if c in(0,1,3): ST2(a)
        bo=(c&1)*16384
        for ks in range(2):
            for t in range(4):
                b=HF(ks,t); a(f"ds_read_b128 v[{b}:{b+3}], v{16+ks} offset:{bo+t*2048}")
                b=WF(ks,t)
                for h in range(2):
                    a(f"ds_read_b64_tr_b16 v[{b+2*h}:{b+2*h+1}], v{18+t} offset:{bo+8192+ks*4096+h*512}")
        a("s_waitcnt lgkmcnt(0)")
        if c+2<7: dma(c+2)
        for ks in range(2):
            for j in range(4):
                for t in range(4):
                    d=ACC(j,t); w=WF(ks,j); h=HF(ks,t)
                    a(f"v_mfma_f32_16x16x32_bf16 v[{d}:{d+3}], v[{w}:{w+3}], v[{h}:{h+3}], v[{d}:{d+3}]")
    ST2(a)
    a("v_lshlrev_b32 v7, 4, v4")
    a("v_add_u32 v8, s24, v7")
    for t in range(4):
        for j in range(4):
            d=ACC(j,t); a(f"ds_write_b128 v8, v[{d}:{d+3}] offset:{(t*4+j)*1024}")
    a("s_waitcnt lgkmcnt(0)")
    vq.wait_for(a,lambda t:t==("E",0))
    a("s_barrier")
    a("s_lshl_b32 s25, s18, 12")
    a("v_add_u32 v8, s25, v7")
    a(f"v_add_u32 v9, {2*WB}, v8")
    for ww in range(4):
        for j in range(4):
            b=64+16*ww+4*j
            a(f"ds_read_b128 v[{b}:{b+3}], v{8+(ww>>1)} offset:{(ww&1)*WB+j*1024}")
    a("v_lshlrev_b32 v5, 7, v1")
    a("v_lshl_add_u32 v5, v2, 3, v5")
    a("v_add_u32 v5, s26, v5")
    for j in range(4):
        a(f"ds_read_b64 v[{128+2*j}:{129+2*j}], v5 offset:{32*j}")
        a(f"ds_read_b64 v[{136+2*j}:{137+2*j}], v5 offset:{8192+32*j}")
    a("v_lshrrev_b32 v6, 2, v1")
    a("v_lshl_add_u32 v6, v2, 2, v6")
    a("v_lshlrev_b32 v6, 7, v6")
    a("v_and_b32 v7, 3, v0")
    a("v_lshl_add_u32 v6, v7, 3, v6")
    a("s_lshl_b32 s25, s18, 5")
    a(f"s_add_u32 s25, s25, {EP+16384}")
    a("v_add_u32 v6, s25, v6")
    for j in range(4):
        a(f"ds_read_b64_tr_b16 v[{144+2*j}:{145+2*j}], v6 offset:{2048*j}")
    a("s_mov_b32 s27, 0xffff0000")
    a("s_waitcnt lgkmcnt(0)")
    for j in range(4):
        for i in range(4):
            b=64+4*j+i
            a(f"v_add_f32 v{b}, v{b}, v{b+16}")
            a(f"v_add_f32 v{b+32}, v{b+32}, v{b+48}")
            a(f"v_add_f32 v{b}, v{b}, v{b+32}")
        for p in range(2):
            b=64+4*j+2*p
            X=128+2*j+p; XN=136+2*j+p; Y=144+2*j+p; D=24+2*j+p
            a(f"v_cvt_pk_bf16_f32 v160, v{b}, v{b+1}")
            a(f"v_lshlrev_b32 v161, 16, v{XN}"); a(f"v_and_b32 v162, s27, v{XN}")
            a(f"v_lshlrev_b32 v163, 16, v{D}"); a(f"v_and_b32 v164, s27, v{D}")
            a(f"v_mul_f32 v161, v161, v163"); a(f"v_mul_f32 v162, v162, v164")
            a(f"v_cvt_pk_bf16_f32 v161, v161, v162")
            a(f"v_lshlrev_b32 v162, 16, v161"); a(f"v_and_b32 v161, s27, v161")
            a(f"v_lshlrev_b32 v163, 16, v{Y}"); a(f"v_and_b32 v164, s27, v{Y}")
            a(f"v_add_f32 v162, v163, v162"); a(f"v_add_f32 v161, v164, v161")
            a(f"v_cvt_pk_bf16_f32 v161, v162, v161")
            a(f"v_lshlrev_b32 v162, 16, v161"); a(f"v_and_b32 v161, s27, v161")
            a(f"v_lshlrev_b32 v163, 16, v{X}"); a(f"v_and_b32 v164, s27, v{X}")
            a(f"v_add_f32 v162, v163, v162"); a(f"v_add_f32 v161, v164, v161")
            a(f"v_cvt_pk_bf16_f32 v161, v162, v161")
            a(f"v_lshlrev_b32 v162, 16, v161"); a(f"v_and_b32 v161, s27, v161")
            a(f"v_lshlrev_b32 v163, 16, v160"); a(f"v_and_b32 v164, s27, v160")
            a(f"v_add_f32 v162, v162, v163"); a(f"v_add_f32 v161, v161, v164")
            a(f"v_cvt_pk_bf16_f32 v{152+2*j+p}, v162, v161")
        a(f"ds_write_b64 v5, v[{152+2*j}:{153+2*j}] offset:{32*j}")
    a("v_lshlrev_b32 v7, 4, v4")
    a("v_add_u32 v7, s26, v7")
    a("s_waitcnt lgkmcnt(0)")
    a("ds_read_b128 v[64:67], v7")
    a("ds_read_b128 v[68:71], v7 offset:1024")
    a("s_movk_i32 s25, 0x2000")
    a("s_waitcnt lgkmcnt(0)")
    a("buffer_store_dwordx4 v[64:67], v14, s[52:55], 0 offen")
    a("buffer_store_dwordx4 v[68:71], v14, s[52:55], s25 offen")
def gen_g2():
    a=Asm()
    a("g2_kernel:")
    a("s_cmp_ge_u32 s2, 256")
    a("s_cbranch_scc1 G2_END")
    ST2(a)
    g2_body(a)
    ST2(a); ST2.dump(a,3)
    a("G2_END:")
    a("s_endpgm")
    return a.render(), dict(name="g2_kernel", grid=256, block=256, lds=EP+24576, vgpr=192, sgpr=100)
```

```python
from asmlib import Asm
WS_XN=0; WS_XNT=2<<20; WS_KRH=5<<20; WS_KRL=7<<20; WS_YT=9<<20; WS_H=16<<20
XNT_STRIDE=4160; XNT_SIZE=512*4160
def srd(a, d, lo, hi, size, add=None):
    if add:
        a(f"s_add_u32 s{d}, s{lo}, {add}")
        a(f"s_addc_u32 s{d+1}, s{hi}, 0")
    else:
        a(f"s_mov_b32 s{d}, s{lo}")
        a(f"s_mov_b32 s{d+1}, s{hi}")
    a(f"s_and_b32 s{d+1}, s{d+1}, 0xffff")
    a(f"s_mov_b32 s{d+2}, {size}")
    a(f"s_mov_b32 s{d+3}, 0x00020000")

NLN=128
def gen_k1():
    a=Asm()
    a("k1_kernel:")
    a(f"s_cmp_ge_u32 s2, {NLN+512}")
    a("s_cbranch_scc1 K1_END")
    a(f"s_cmp_ge_u32 s2, {NLN}")
    a("s_cbranch_scc1 K1_KGEN")
    a("s_load_dwordx2 s[4:5], s[0:1], 0")
    a("s_load_dwordx2 s[6:7], s[0:1], 104")
    a("v_lshrrev_b32 v1, 6, v0")
    a("v_and_b32 v2, 63, v0")
    a("s_lshl_b32 s3, s2, 14")
    a("v_lshlrev_b32 v3, 12, v1")
    a("v_lshl_add_u32 v3, v2, 4, v3")
    a("v_add_u32 v4, s3, v3")
    a("s_waitcnt lgkmcnt(0)")
    srd(a,8,4,5,2<<20)
    srd(a,12,6,7,2<<20,add=None)
    srd(a,16,6,7,XNT_SIZE,add=WS_XNT)
    for r in range(4):
        a(f"buffer_load_dwordx4 v[{8+4*r}:{11+4*r}], v4, s[8:11], 0 offen offset:{1024*r}")
    F=lambda r,i: 32+8*r+i
    S=lambda r: 64+r
    a("s_mov_b32 s20, 0xffff0000")
    a("v_mov_b32 v80, 0x3b000000")
    for r in range(4):
        a(f"s_waitcnt vmcnt({3-r})")
        for i in range(4):
            a(f"v_lshlrev_b32 v{F(r,2*i)}, 16, v{8+4*r+i}")
            a(f"v_and_b32 v{F(r,2*i+1)}, s20, v{8+4*r+i}")
        a(f"v_add_f32 v{S(r)}, v{F(r,0)}, v{F(r,1)}")
        a(f"v_add_f32 v70, v{F(r,2)}, v{F(r,3)}")
        a(f"v_add_f32 v71, v{F(r,4)}, v{F(r,5)}")
        a(f"v_add_f32 v72, v{F(r,6)}, v{F(r,7)}")
        a(f"v_add_f32 v{S(r)}, v{S(r)}, v70")
        a(f"v_add_f32 v71, v71, v72")
        a(f"v_add_f32 v{S(r)}, v{S(r)}, v71")
    def wave_reduce():
        for m in ("row_shr:1 row_mask:0xf bank_mask:0xf","row_shr:2 row_mask:0xf bank_mask:0xf","row_shr:4 row_mask:0xf bank_mask:0xf","row_shr:8 row_mask:0xf bank_mask:0xf","row_bcast:15 row_mask:0xa bank_mask:0xf","row_bcast:31 row_mask:0xc bank_mask:0xf"):
            for r in range(4):
                a(f"v_add_f32_dpp v{S(r)}, v{S(r)}, v{S(r)} {m}")
    wave_reduce()
    for r in range(4): a(f"v_readlane_b32 s{24+r}, v{S(r)}, 63")
    M=lambda r: 68+r
    M=lambda r: 84+r
    for r in range(4): a(f"v_mul_f32 v{M(r)}, s{24+r}, v80")
    for r in range(4):
        for i in range(8):
            a(f"v_sub_f32 v70, v{F(r,i)}, v{M(r)}")
            if i==0: a(f"v_mul_f32 v{S(r)}, v70, v70")
            else: a(f"v_fmac_f32 v{S(r)}, v70, v70")
    wave_reduce()
    for r in range(4): a(f"v_readlane_b32 s{28+r}, v{S(r)}, 63")
    a("s_mov_b32 s21, 0x3727c5ac")
    for r in range(4):
        a(f"v_mul_f32 v70, s{28+r}, v80")
        a(f"v_cvt_pk_bf16_f32 v71, v{M(r)}, v70")
        a(f"v_lshlrev_b32 v{M(r)}, 16, v71")
        a(f"v_and_b32 v70, s20, v71")
        a(f"v_add_f32 v70, s21, v70")
        a(f"v_cvt_pk_bf16_f32 v70, v70, v70")
        a(f"v_and_b32 v70, s20, v70")
        a(f"v_sqrt_f32 v70, v70")
        a(f"v_cvt_pk_bf16_f32 v70, v70, v70")
        a(f"v_and_b32 v{88+r}, s20, v70")
        a(f"v_rcp_f32 v{92+r}, v{88+r}")
    for r in range(4):
        for i in range(4):
            a(f"v_sub_f32 v70, v{F(r,2*i)}, v{M(r)}")
            a(f"v_sub_f32 v71, v{F(r,2*i+1)}, v{M(r)}")
            a(f"v_cvt_pk_bf16_f32 v72, v70, v71")
            a(f"v_lshlrev_b32 v70, 16, v72")
            a(f"v_and_b32 v71, s20, v72")
            a(f"v_mul_f32 v73, v70, v{92+r}")
            a(f"v_mul_f32 v74, v71, v{92+r}")
            a(f"v_fma_f32 v75, -v73, v{88+r}, v70")
            a(f"v_fma_f32 v76, -v74, v{88+r}, v71")
            a(f"v_fmac_f32 v73, v75, v{92+r}")
            a(f"v_fmac_f32 v74, v76, v{92+r}")
            a(f"v_cvt_pk_bf16_f32 v{8+4*r+i}, v73, v74")
        a(f"buffer_store_dwordx4 v[{8+4*r}:{11+4*r}], v4, s[12:15], 0 offen offset:{1024*r}")
        a(f"ds_write_b128 v3, v[{8+4*r}:{11+4*r}] offset:{1024*r}")
    a("s_waitcnt lgkmcnt(0)")
    a("s_barrier")
    a("v_lshlrev_b32 v5, 2, v0")
    for r in range(16):
        a(f"ds_read_b32 v{32+r}, v5 offset:{1024*r}")
    a("s_mov_b32 s22, 0x05040100")
    a("s_mov_b32 s23, 0x07060302")
    a(f"v_mul_u32_u24 v6, {2*XNT_STRIDE}, v0")
    a("s_lshl_b32 s3, s2, 5")
    a("s_add_u32 s3, s3, 32")
    a("v_add_u32 v6, s3, v6")
    a("s_waitcnt lgkmcnt(0)")
    for k in range(8):
        a(f"v_perm_b32 v{48+k}, v{33+2*k}, v{32+2*k}, s22")
        a(f"v_perm_b32 v{56+k}, v{33+2*k}, v{32+2*k}, s23")
    a("buffer_store_dwordx4 v[48:51], v6, s[16:19], 0 offen")
    a("buffer_store_dwordx4 v[52:55], v6, s[16:19], 0 offen offset:16")
    a(f"v_add_u32 v6, {XNT_STRIDE}, v6")
    a("buffer_store_dwordx4 v[56:59], v6, s[16:19], 0 offen")
    a("buffer_store_dwordx4 v[60:63], v6, s[16:19], 0 offen offset:16")
    a("s_endpgm")
    a("K1_KGEN:")
    a(f"s_sub_u32 s3, s2, {NLN}")
    a("s_load_dwordx8 s[4:11], s[0:1], 8")
    a("s_load_dwordx2 s[12:13], s[0:1], 40")
    a("s_load_dwordx2 s[14:15], s[0:1], 104")
    a("v_and_b32 v1, 15, v0")
    a("v_bfe_u32 v2, v0, 4, 2")
    a("v_lshrrev_b32 v3, 6, v0")
    a("v_lshrrev_b32 v4, 4, v0")
    a("v_lshlrev_b32 v4, 4, v4")
    a("s_lshl_b32 s16, s3, 8")
    a("v_add_u32 v4, s16, v4")
    a("s_waitcnt lgkmcnt(0)")
    srd(a,20,4,5,131072); srd(a,24,6,7,131072); srd(a,28,8,9,131072); srd(a,32,10,11,131072)
    a("buffer_load_dwordx4 v[8:11], v4, s[20:23], 0 offen")
    a("buffer_load_dwordx4 v[12:15], v4, s[24:27], 0 offen")
    a("buffer_load_dwordx4 v[16:19], v4, s[28:31], 0 offen")
    a("buffer_load_dwordx4 v[20:23], v4, s[32:35], 0 offen")
    a("s_lshl_b32 s16, s3, 1")
    a("s_and_b32 s17, s16, 0xfffffffc")
    a("s_load_dword s18, s[12:13], s17")
    srd(a,36,14,15,2<<20,add=WS_KRH); srd(a,40,14,15,2<<20,add=WS_KRL)
    a("v_lshlrev_b32 v5, 3, v1")
    a("v_cvt_f32_u32 v24, v5")
    a("v_and_b32 v5, 7, v1")
    a("v_lshrrev_b32 v6, 3, v1")
    a("v_lshl_add_u32 v5, v6, 7, v5")
    a("v_cvt_f32_u32 v25, v5")
    a("v_lshrrev_b32 v5, 2, v1")
    a("v_lshlrev_b32 v5, 7, v5")
    a("v_and_b32 v6, 3, v1")
    a("v_lshl_add_u32 v5, v6, 1, v5")
    a("v_add_u32 v5, 0x100, v5")
    a("v_subrev_u32 v6, 8, v1")
    a("v_lshrrev_b32 v7, 1, v6")
    a("v_lshlrev_b32 v7, 7, v7")
    a("v_and_b32 v6, 1, v6")
    a("v_lshl_add_u32 v7, v6, 2, v7")
    a("v_add_u32 v7, 0x200, v7")
    a("v_cmp_gt_u32 vcc, 8, v1")
    a("v_cndmask_b32 v5, v7, v5, vcc")
    a("v_cvt_f32_u32 v26, v5")
    a("v_lshlrev_b32 v5, 7, v1")
    a("v_add_u32 v5, 0x400, v5")
    a("v_cvt_f32_u32 v27, v5")
    a("v_mul_u32_u24 v28, 0xc00, v3")
    a("v_and_b32 v5, 1, v2")
    a("v_lshlrev_b32 v5, 2, v5")
    a("v_lshrrev_b32 v6, 1, v2")
    a("v_lshl_add_u32 v5, v6, 7, v5")
    a("v_lshl_add_u32 v5, v1, 3, v5")
    a("v_lshl_add_u32 v29, v5, 2, v28")
    a("v_lshlrev_b32 v5, 6, v2")
    a("v_lshl_add_u32 v6, v1, 2, v5")
    a("v_add_u32 v6, 256, v6")
    a("v_lshl_add_u32 v7, v1, 1, v5")
    a("v_add_u32 v7, 256, v7")
    a("v_cmp_gt_u32 vcc, 2, v2")
    a("v_cndmask_b32 v6, v7, v6, vcc")
    a("v_lshl_add_u32 v30, v6, 2, v28")
    a("v_mov_b32 v6, 128")
    a("v_cndmask_b32 v6, v6, 8, vcc")
    a("v_add_u32 v31, v30, v6")
    a("v_add_u32 v6, v5, v1")
    a("v_add_u32 v6, 512, v6")
    a("v_lshl_add_u32 v32, v6, 2, v28")
    for i in range(12): a(f"v_mov_b32 v{36+i}, 0")
    a("s_mov_b32 s44, 0x3fb8aa3b")
    a("s_mov_b32 s45, 0xffff0000")
    a("s_mov_b32 s46, 0x3e22f983")
    a("s_waitcnt lgkmcnt(0)")
    a("s_and_b32 s16, s16, 2")
    a("s_lshl_b32 s16, s16, 3")
    a("s_lshr_b32 s18, s18, s16")
    a("s_lshl_b32 s18, s18, 16")
    a("v_mov_b32 v33, s18")
    a("v_mul_f32 v33, s44, v33")
    a("v_exp_f32 v33, v33")
    a("v_cvt_pk_bf16_f32 v33, v33, v33")
    a("v_and_b32 v33, s45, v33")
    a("v_add_f32 v34, v33, v33")
    a("s_waitcnt vmcnt(0)")
    for n in range(8):
        q=n>>1
        def unp(dst,src):
            if n&1: a(f"v_and_b32 v{dst}, s45, v{src+q}")
            else: a(f"v_lshlrev_b32 v{dst}, 16, v{src+q}")
        unp(50,8); unp(51,12); unp(52,16); unp(53,20)
        a("v_mul_f32 v50, s44, v50")
        a("v_exp_f32 v50, v50")
        a("v_mul_f32 v51, v51, v33")
        a("v_mul_f32 v52, v52, v34")
        a("v_cvt_pk_bf16_f32 v50, v50, v50")
        a("v_and_b32 v50, s45, v50")
        a("v_mul_f32 v53, v53, v34")
        a("v_mul_f32 v50, v50, v33")
        a("v_mul_f32 v51, s46, v51")
        a("v_mul_f32 v50, s44, v50")
        for k in range(4):
            t=24+k
            a(f"v_mul_f32 v{54+k}, -v50, v{t}")
            a(f"v_mul_f32 v{58+k}, v51, v{t}")
        for k in range(4):
            a(f"v_exp_f32 v{54+k}, v{54+k}")
            a(f"v_fract_f32 v{58+k}, v{58+k}")
        for k in range(4):
            a(f"v_cos_f32 v{62+k}, v{58+k}")
            a(f"v_sin_f32 v{66+k}, v{58+k}")
        for k in range(4):
            a(f"v_mul_f32 v{62+k}, v{62+k}, v{54+k}")
            a(f"v_mul_f32 v{66+k}, v{66+k}, v{54+k}")
        a("v_mul_f32 v70, v52, v62")
        a("v_mul_f32 v71, v52, v66")
        a("v_fma_f32 v70, -v53, v66, v70")
        a("v_fma_f32 v71, v53, v62, v71")
        a("v_sub_f32 v71, 0, v71")
        for tau in range(3):
            a(f"v_mfma_f32_16x16x4_f32 v[{36+4*tau}:{39+4*tau}], v{63+tau}, v70, v[{36+4*tau}:{39+4*tau}]")
            a(f"v_mfma_f32_16x16x4_f32 v[{36+4*tau}:{39+4*tau}], v{67+tau}, v71, v[{36+4*tau}:{39+4*tau}]")
    for i in range(4): a(f"ds_write_b32 v29, v{36+i} offset:{4*i}")
    a("ds_write_b32 v30, v40"); a("ds_write_b32 v30, v41 offset:4")
    a("ds_write_b32 v31, v42"); a("ds_write_b32 v31, v43 offset:4")
    for i in range(4): a(f"ds_write_b32 v32, v{44+i} offset:{64*i}")
    a("v_lshlrev_b32 v5, 3, v0")
    a("v_sub_u32 v5, 0x7ff, v5")
    a("s_movk_i32 s47, 0xbd80")
    for e in range(0,8,2):
        a(f"v_subrev_u32 v6, {e}, v5")
        a(f"v_subrev_u32 v7, {e+1}, v5")
        a(f"v_cvt_f32_u32 v72, v6")
        a(f"v_cvt_f32_u32 v73, v7")
        a(f"v_cvt_pk_bf16_f32 v72, v72, v73")
        a(f"v_lshrrev_b32 v73, 16, v72")
        a(f"v_and_b32 v72, 0xffff, v72")
        a(f"v_add_u32 v72, s47, v72")
        a(f"v_add_u32 v73, s47, v73")
        a(f"v_cmp_gt_u32 vcc, 0x80, v6")
        a(f"v_cndmask_b32 v72, v72, v6, vcc")
        a(f"v_cmp_gt_u32 vcc, 0x80, v7")
        a(f"v_cndmask_b32 v73, v73, v7, vcc")
        a(f"v_lshlrev_b32 v{76+e}, 2, v72")
        a(f"v_lshlrev_b32 v{77+e}, 2, v73")
    a("s_waitcnt lgkmcnt(0)")
    a("s_barrier")
    for e in range(8):
        for w in range(4):
            a(f"ds_read_b32 v{84+4*e+w}, v{76+e} offset:{3072*w}")
    a("s_waitcnt lgkmcnt(0)")
    for e in range(8):
        b=84+4*e
        a(f"v_add_f32 v{b}, v{b}, v{b+1}")
        a(f"v_add_f32 v{b+2}, v{b+2}, v{b+3}")
        a(f"v_add_f32 v{b}, v{b}, v{b+2}")
    for p in range(4):
        x0=84+8*p; x1=84+8*p+4
        a(f"v_cvt_pk_bf16_f32 v{120+p}, v{x0}, v{x1}")
        a(f"v_lshlrev_b32 v72, 16, v{120+p}")
        a(f"v_and_b32 v73, s45, v{120+p}")
        a(f"v_sub_f32 v72, v{x0}, v72")
        a(f"v_sub_f32 v73, v{x1}, v73")
        a(f"v_cvt_pk_bf16_f32 v{124+p}, v72, v73")
    a("s_lshl_b32 s16, s3, 12")
    a("v_lshlrev_b32 v5, 4, v0")
    a("v_add_u32 v5, s16, v5")
    a("buffer_store_dwordx4 v[120:123], v5, s[36:39], 0 offen")
    a("buffer_store_dwordx4 v[124:127], v5, s[40:43], 0 offen")
    srd(a,48,14,15,XNT_SIZE,add=WS_XNT)
    a(f"s_mul_i32 s16, s3, {XNT_STRIDE}")
    a("v_and_b32 v5, 1, v0")
    a("v_lshlrev_b32 v5, 4, v5")
    a("v_bfe_u32 v6, v0, 1, 1")
    a("v_mul_u32_u24 v6, 4128, v6")
    a("v_add3_u32 v5, v5, v6, s16")
    for i in range(4): a(f"v_mov_b32 v{8+i}, 0")
    a("v_cmp_gt_u32 vcc, 4, v0")
    a("s_and_saveexec_b64 s[52:53], vcc")
    a("s_cbranch_execz K1_END")
    a("buffer_store_dwordx4 v[8:11], v5, s[48:51], 0 offen")
    a("K1_END:")
    a("s_endpgm")
    return a.render(), dict(name="k1_kernel", grid=NLN+512, block=256, lds=16384, vgpr=128, sgpr=64)
```

```python
import os
ON=bool(int(os.environ.get("STAMPS","0")))
class St:
    def __init__(s): s.n=0
    def __call__(s,a):
        if not ON: return
        a(f"s_memtime s[{70+2*s.n}:{71+2*s.n}]"); s.n+=1
    def dump(s,a,kid=0):
        if not ON: return
        from gen_k1 import srd
        a("s_load_dwordx2 s[4:5], s[0:1], 104")
        a("s_waitcnt lgkmcnt(0) vmcnt(0)")
        srd(a,8,4,5,1<<20,add=(48<<20)+(kid<<18))
        a("v_lshrrev_b32 v1, 6, v0")
        a("s_lshl_b32 s3, s2, 8")
        a("v_lshlrev_b32 v1, 6, v1")
        a("v_add_u32 v1, s3, v1")
        for i in range(s.n):
            a(f"v_mov_b32 v2, s{70+2*i}")
            a(f"buffer_store_dword v2, v1, s[8:11], 0 offen offset:{4*i}")
```

```python
import sys
from gen_k1 import *
from gen_conv import gen_conv
from gen_g1 import gen_g1
from gen_g2 import gen_g2
HDR=open("parallel_sum__ssm_conv_s4d__swiglu_ffn__prompt.s.ref").read().split("; Override launch")[0]
def build(kernels, path):
    s=HDR
    for body,m in kernels:
        s+=f"; @launch kernel={m['name']} grid=({m['grid']},1,1) block=({m['block']},1,1) lds={m['lds']}\n"
    s+='.amdgcn_target "amdgcn-amd-amdhsa--gfx950"\n.text\n'
    for body,m in kernels:
        s+=f".globl {m['name']}\n.p2align 8\n.type {m['name']},@function\n"+body
    s+='.section .rodata,"a"\n'
    for body,m in kernels:
        nv=m['vgpr']; acc=m.get('accum',(nv+3)//4*4 if nv<=256 else 256)
        s+=f""".p2align 6
.amdhsa_kernel {m['name']}
  .amdhsa_next_free_vgpr {nv}
  .amdhsa_next_free_sgpr {m['sgpr']}
  .amdhsa_accum_offset {acc}
  .amdhsa_group_segment_fixed_size 0
  .amdhsa_kernarg_size 112
  .amdhsa_user_sgpr_count 2
  .amdhsa_user_sgpr_kernarg_segment_ptr 1
  .amdhsa_system_sgpr_workgroup_id_x 1
.end_amdhsa_kernel
"""
    open(path,"w").write(s)
if __name__=="__main__":
    ks=[gen_k1(),gen_conv(),gen_g1(),gen_g2()]
    build(ks, sys.argv[1] if len(sys.argv)>1 else "t.s")
```

```python
from asmlib import Asm
from gen_k1 import *
from stamps import St
SC=St()
COFF=[0,1,4,5,8,8,11,12]
CSTR=4352
UB=8*CSTR
KRB=4608
DB=UB+2*KRB
def conv_body(a, L="CV"):
    a("s_load_dwordx2 s[6:7], s[0:1], 104")
    a("v_and_b32 v1, 15, v0")
    a("v_bfe_u32 v2, v0, 4, 2")
    a("v_lshrrev_b32 v3, 6, v0")
    a("s_waitcnt lgkmcnt(0)")
    srd(a,8,6,7,XNT_SIZE,add=WS_XNT)
    srd(a,12,6,7,2<<20,add=WS_KRH)
    srd(a,16,6,7,2<<20,add=WS_KRL)
    srd(a,20,6,7,2<<20,add=WS_YT)
    a(f"s_mul_i32 s3, s2, {2*XNT_STRIDE}")
    a("v_lshlrev_b32 v4, 4, v0")
    a("v_add_u32 v5, s3, v4")
    a("s_lshl_b32 s24, s2, 13")
    a(f"s_movk_i32 s25, {XNT_STRIDE}")
    a("v_add_u32 v6, s24, v4")
    a("v_lshrrev_b32 v7, 1, v0")
    a(f"v_mul_u32_u24 v8, {XNT_STRIDE}, v7")
    a("v_and_b32 v9, 1, v0")
    a("v_lshl_add_u32 v8, v9, 4, v8")
    a("v_add_u32 v8, 4096, v8")
    a("v_add_u32 v8, s3, v8")
    a(f"v_mul_u32_u24 v10, {DB}, v7")
    a("v_lshl_add_u32 v10, v9, 4, v10")
    a("v_add_u32 v10, 4096, v10")
    for dd in range(2):
        for q in range(5):
            a(f"buffer_load_dwordx4 v[{16+20*dd+4*q}:{19+20*dd+4*q}], v5, s[8:11], {'s25' if dd else '0'} offen offset:{4*q}")
    for dd in range(2):
        a(f"buffer_load_dwordx4 v[{76+8*dd}:{79+8*dd}], v6, s[12:15], 0 offen offset:{0}" if dd==0 else f"buffer_load_dwordx4 v[{76+8*dd}:{79+8*dd}], v11, s[12:15], 0 offen")
        a(f"buffer_load_dwordx4 v[{80+8*dd}:{83+8*dd}], v6, s[16:19], 0 offen offset:{0}" if dd==0 else f"buffer_load_dwordx4 v[{80+8*dd}:{83+8*dd}], v11, s[16:19], 0 offen")
        if dd==0: a("v_add_u32 v11, 4096, v6")
    a("v_cmp_gt_u32 vcc, 4, v0")
    a("s_and_saveexec_b64 s[26:27], vcc")
    a(f"s_cbranch_execz {L}_X1")
    for q in range(5):
        a(f"buffer_load_dwordx4 v[{56+4*q}:{59+4*q}], v8, s[8:11], 0 offen offset:{4*q}")
    a(f"{L}_X1:")
    a("s_mov_b64 exec, s[26:27]")
    for i in range(4): a(f"v_mov_b32 v{100+i}, 0")
    a("v_lshrrev_b32 v12, 6, v0")
    a(f"v_mul_u32_u24 v12, {DB}, v12")
    a("v_bfe_u32 v13, v0, 5, 1")
    a(f"v_mul_u32_u24 v13, {KRB}, v13")
    a("v_and_b32 v14, 31, v0")
    a("v_lshlrev_b32 v14, 4, v14")
    a("v_add3_u32 v12, v12, v13, v14")
    a("v_cmp_gt_u32 vcc, 0x80, v0")
    a("s_and_saveexec_b64 s[26:27], vcc")
    a(f"s_cbranch_execz {L}_X2")
    a(f"ds_write_b128 v12, v[100:103] offset:{UB+4096}")
    a(f"{L}_X2:")
    a("s_mov_b64 exec, s[26:27]")
    def copies(base, vaddr, ldsoff):
        for s in range(8):
            q=s>>1
            if s&1:
                for k in range(4):
                    a(f"v_alignbit_b32 v{104+4*q+k}, v{base+4*(q+1)+k}, v{base+4*q+k}, 16")
                src=104+4*q
            else: src=base+4*q
            a(f"ds_write_b128 v{vaddr}, v[{src}:{src+3}] offset:{ldsoff+s*CSTR+16*COFF[s]}")
    SC(a)
    a("s_waitcnt vmcnt(0)")
    SC(a)
    a(f"v_add_u32 v15, {DB}, v4")
    copies(16,4,0)
    copies(36,15,0)
    a(f"ds_write_b128 v4, v[76:79] offset:{UB}")
    a(f"ds_write_b128 v4, v[80:83] offset:{UB+KRB}")
    a(f"ds_write_b128 v15, v[84:87] offset:{UB}")
    a(f"ds_write_b128 v15, v[88:91] offset:{UB+KRB}")
    a("v_cmp_gt_u32 vcc, 4, v0")
    a("s_and_saveexec_b64 s[26:27], vcc")
    a(f"s_cbranch_execz {L}_X3")
    copies(56,10,0)
    a(f"{L}_X3:")
    a("s_mov_b64 exec, s[26:27]")
    a("v_add_u32 v5, 1, v1")
    a("v_and_b32 v6, 7, v5")
    a(f"v_mul_u32_u24 v7, {CSTR}, v6")
    pk=sum(c<<(4*i) for i,c in enumerate(COFF))
    a(f"s_mov_b32 s28, {pk}")
    a("v_lshlrev_b32 v8, 2, v6")
    a("v_lshrrev_b32 v8, v8, s28")
    a("v_and_b32 v8, 15, v8")
    a("v_lshl_add_u32 v7, v8, 4, v7")
    a("v_and_b32 v5, 0x18, v5")
    a("v_lshl_add_u32 v5, v2, 3, v5")
    a("v_lshl_add_u32 v7, v5, 1, v7")
    a("v_lshrrev_b32 v8, 1, v3")
    a(f"v_mul_u32_u24 v9, {DB}, v8")
    a("v_and_b32 v10, 1, v3")
    a("v_lshl_add_u32 v9, v10, 8, v9")
    a("v_add_u32 v92, v7, v9")
    a("v_lshlrev_b32 v5, 5, v1")
    a("v_lshlrev_b32 v6, 4, v2")
    a("v_sub_u32 v5, v6, v5")
    a(f"v_add_u32 v5, {UB+2*2032-64*56}, v5")
    a("v_add_u32 v93, v5, v9")
    ACC=0
    acc=lambda C: f"v[{224+4*C}:{227+4*C}]"
    for i in range(32): a(f"v_mov_b32 v{224+i}, 0")
    a("s_waitcnt lgkmcnt(0)")
    a("s_barrier")
    a("v_mov_b32 v208, v92"); a("v_mov_b32 v209, v93")
    a("v_mov_b32 v210, v8"); a("v_mov_b32 v211, v10"); a("v_mov_b32 v212, v1"); a("v_mov_b32 v213, v2"); a("v_mov_b32 v214, v3")
    def RA(st,ap): b=16+96*st+4*ap; return f"v[{b}:{b+3}]"
    def RH(st,m): b=16+96*st+32+4*m; return f"v[{b}:{b+3}]"
    def RL(st,m): b=16+96*st+64+4*m; return f"v[{b}:{b+3}]"
    def loads(st,b):
        out=[]
        for i in range(8):
            out.append(f"ds_read_b128 {RA(st,i)}, v208 offset:{512*i+64*b}")
            out.append(f"ds_read_b128 {RH(st,i)}, v209 offset:{64*(b-8*i+56)}")
            out.append(f"ds_read_b128 {RL(st,i)}, v209 offset:{64*(b-8*i+56)+KRB}")
        return out
    SC(a)
    for l in loads(0,0): a(l)
    for b in range(4):
        st=b&1
        nxt=loads(st^1,b+1) if b<3 else []
        a("s_waitcnt lgkmcnt(0)")
        k=0
        for C in range(8):
            for ap in range(C+1):
                m=C-ap
                a(f"v_mfma_f32_16x16x32_bf16 {acc(C)}, {RA(st,ap)}, {RH(st,m)}, {acc(C)}")
                a(f"v_mfma_f32_16x16x32_bf16 {acc(C)}, {RA(st,ap)}, {RL(st,m)}, {acc(C)}")
                if nxt and k>=4: a(nxt.pop(0))
                k+=1
        while nxt: a(nxt.pop(0))
    SC(a)
    a("s_barrier")
    a("v_and_b32 v5, 63, v0")
    a("v_lshlrev_b32 v5, 4, v5")
    a("v_lshl_add_u32 v6, v214, 12, v5")
    a("v_xor_b32 v7, 0x1000, v6")
    a("v_readfirstlane_b32 s30, v211")
    a("s_cmp_eq_u32 s30, 0")
    a(f"s_cbranch_scc0 {L}_ODD")
    for i in range(4): a(f"ds_write_b128 v6, {acc(4+i)} offset:{1024*i}")
    a(f"s_branch {L}_J")
    a(f"{L}_ODD:")
    for i in range(4): a(f"ds_write_b128 v6, {acc(i)} offset:{1024*i}")
    for i in range(16): a(f"v_mov_b32 v{224+i}, v{240+i}")
    a(f"{L}_J:")
    a("s_waitcnt lgkmcnt(0)")
    a("s_barrier")
    for i in range(4): a(f"ds_read_b128 v[{16+4*i}:{19+4*i}], v7 offset:{1024*i}")
    a("s_lshl_b32 s3, s2, 13")
    a("v_lshlrev_b32 v8, 12, v210")
    a("v_lshl_add_u32 v8, v211, 11, v8")
    a("v_lshl_add_u32 v8, v212, 5, v8")
    a("v_lshl_add_u32 v8, v213, 3, v8")
    a("v_add_u32 v8, s3, v8")
    a("s_waitcnt lgkmcnt(0)")
    for i in range(4):
        for k in range(4): a(f"v_add_f32 v{16+4*i+k}, v{16+4*i+k}, v{224+4*i+k}")
        a(f"v_cvt_pk_bf16_f32 v{32+2*i}, v{16+4*i}, v{17+4*i}")
        a(f"v_cvt_pk_bf16_f32 v{33+2*i}, v{18+4*i}, v{19+4*i}")
        a(f"buffer_store_dwordx2 v[{32+2*i}:{33+2*i}], v8, s[20:23], 0 offen offset:{512*i}")
def gen_conv():
    a=Asm()
    a("conv_kernel:")
    a("s_cmp_ge_u32 s2, 256")
    a("s_cbranch_scc1 CV_END")
    SC(a)
    conv_body(a)
    SC(a); a("s_waitcnt vmcnt(0)"); SC(a); SC.dump(a,4)
    a("CV_END:")
    a("s_endpgm")
    return a.render(), dict(name="conv_kernel", grid=256, block=256, lds=2*DB, vgpr=256, sgpr=100)
```

```python
from asmlib import Asm
from stamps import St
S1=St(); S1b=St()
WS_XN=0; WS_XNT=2<<20; WS_KRH=5<<20; WS_KRL=7<<20; WS_YT=9<<20; WS_H=16<<20
XNT_STRIDE=4160; XNT_SIZE=512*4160
def srd(a, d, lo, hi, size, add=None):
    if add:
        a(f"s_add_u32 s{d}, s{lo}, {add}")
        a(f"s_addc_u32 s{d+1}, s{hi}, 0")
    else:
        a(f"s_mov_b32 s{d}, s{lo}")
        a(f"s_mov_b32 s{d+1}, s{hi}")
    a(f"s_and_b32 s{d+1}, s{d+1}, 0xffff")
    a(f"s_mov_b32 s{d+2}, {size}")
    a(f"s_mov_b32 s{d+3}, 0x00020000")

NLN=128
def gen_k1():
    a=Asm()
    a("k1_kernel:")
    a(f"s_cmp_ge_u32 s2, {NLN+512}")
    a("s_cbranch_scc1 K1_END")
    a(f"s_cmp_ge_u32 s2, {NLN}")
    a("s_cbranch_scc1 K1_KGEN")
    S1(a)
    a("s_load_dwordx2 s[4:5], s[0:1], 0")
    a("s_load_dwordx2 s[6:7], s[0:1], 104")
    a("v_lshrrev_b32 v1, 6, v0")
    a("v_and_b32 v2, 63, v0")
    a("s_lshl_b32 s3, s2, 14")
    a("v_lshlrev_b32 v3, 12, v1")
    a("v_lshl_add_u32 v3, v2, 4, v3")
    a("v_add_u32 v4, s3, v3")
    a("s_waitcnt lgkmcnt(0)")
    srd(a,8,4,5,2<<20)
    srd(a,12,6,7,2<<20,add=None)
    srd(a,16,6,7,XNT_SIZE,add=WS_XNT)
    for r in range(4):
        a(f"buffer_load_dwordx4 v[{8+4*r}:{11+4*r}], v4, s[8:11], 0 offen offset:{1024*r}")
    F=lambda r,i: 32+8*r+i
    S=lambda r: 64+r
    a("s_mov_b32 s20, 0xffff0000")
    a("v_mov_b32 v80, 0x3b000000")
    for r in range(4):
        a(f"s_waitcnt vmcnt({3-r})")
        for i in range(4):
            a(f"v_lshlrev_b32 v{F(r,2*i)}, 16, v{8+4*r+i}")
            a(f"v_and_b32 v{F(r,2*i+1)}, s20, v{8+4*r+i}")
        a(f"v_add_f32 v{S(r)}, v{F(r,0)}, v{F(r,1)}")
        a(f"v_add_f32 v70, v{F(r,2)}, v{F(r,3)}")
        a(f"v_add_f32 v71, v{F(r,4)}, v{F(r,5)}")
        a(f"v_add_f32 v72, v{F(r,6)}, v{F(r,7)}")
        a(f"v_add_f32 v{S(r)}, v{S(r)}, v70")
        a(f"v_add_f32 v71, v71, v72")
        a(f"v_add_f32 v{S(r)}, v{S(r)}, v71")
    S1(a)
    def wave_reduce():
        for m in ("row_shr:1 row_mask:0xf bank_mask:0xf","row_shr:2 row_mask:0xf bank_mask:0xf","row_shr:4 row_mask:0xf bank_mask:0xf","row_shr:8 row_mask:0xf bank_mask:0xf","row_bcast:15 row_mask:0xa bank_mask:0xf","row_bcast:31 row_mask:0xc bank_mask:0xf"):
            for r in range(4):
                a(f"v_add_f32_dpp v{S(r)}, v{S(r)}, v{S(r)} {m}")
    wave_reduce()
    for r in range(4): a(f"v_readlane_b32 s{24+r}, v{S(r)}, 63")
    M=lambda r: 68+r
    M=lambda r: 84+r
    for r in range(4): a(f"v_mul_f32 v{M(r)}, s{24+r}, v80")
    for r in range(4):
        for i in range(8):
            a(f"v_sub_f32 v70, v{F(r,i)}, v{M(r)}")
            if i==0: a(f"v_mul_f32 v{S(r)}, v70, v70")
            else: a(f"v_fmac_f32 v{S(r)}, v70, v70")
    wave_reduce()
    for r in range(4): a(f"v_readlane_b32 s{28+r}, v{S(r)}, 63")
    a("s_mov_b32 s21, 0x3727c5ac")
    for r in range(4):
        a(f"v_mul_f32 v70, s{28+r}, v80")
        a(f"v_cvt_pk_bf16_f32 v71, v{M(r)}, v70")
        a(f"v_lshlrev_b32 v{M(r)}, 16, v71")
        a(f"v_and_b32 v70, s20, v71")
        a(f"v_add_f32 v70, s21, v70")
        a(f"v_cvt_pk_bf16_f32 v70, v70, v70")
        a(f"v_and_b32 v70, s20, v70")
        a(f"v_sqrt_f32 v70, v70")
        a(f"v_cvt_pk_bf16_f32 v70, v70, v70")
        a(f"v_and_b32 v{88+r}, s20, v70")
        a(f"v_rcp_f32 v{92+r}, v{88+r}")
    for r in range(4):
        for i in range(4):
            a(f"v_sub_f32 v70, v{F(r,2*i)}, v{M(r)}")
            a(f"v_sub_f32 v71, v{F(r,2*i+1)}, v{M(r)}")
            a(f"v_cvt_pk_bf16_f32 v72, v70, v71")
            a(f"v_lshlrev_b32 v70, 16, v72")
            a(f"v_and_b32 v71, s20, v72")
            a(f"v_mul_f32 v73, v70, v{92+r}")
            a(f"v_mul_f32 v74, v71, v{92+r}")
            a(f"v_fma_f32 v75, -v73, v{88+r}, v70")
            a(f"v_fma_f32 v76, -v74, v{88+r}, v71")
            a(f"v_fmac_f32 v73, v75, v{92+r}")
            a(f"v_fmac_f32 v74, v76, v{92+r}")
            a(f"v_cvt_pk_bf16_f32 v{8+4*r+i}, v73, v74")
        a(f"buffer_store_dwordx4 v[{8+4*r}:{11+4*r}], v4, s[12:15], 0 offen offset:{1024*r}")
        a(f"ds_write_b128 v3, v[{8+4*r}:{11+4*r}] offset:{1024*r}")
    S1(a)
    a("s_waitcnt lgkmcnt(0)")
    a("s_barrier")
    a("v_lshlrev_b32 v5, 2, v0")
    for r in range(16):
        a(f"ds_read_b32 v{32+r}, v5 offset:{1024*r}")
    a("s_mov_b32 s22, 0x05040100")
    a("s_mov_b32 s23, 0x07060302")
    a(f"v_mul_u32_u24 v6, {2*XNT_STRIDE}, v0")
    a("s_lshl_b32 s3, s2, 5")
    a("s_add_u32 s3, s3, 32")
    a("v_add_u32 v6, s3, v6")
    a("s_waitcnt lgkmcnt(0)")
    for k in range(8):
        a(f"v_perm_b32 v{48+k}, v{33+2*k}, v{32+2*k}, s22")
        a(f"v_perm_b32 v{56+k}, v{33+2*k}, v{32+2*k}, s23")
    a("buffer_store_dwordx4 v[48:51], v6, s[16:19], 0 offen")
    a("buffer_store_dwordx4 v[52:55], v6, s[16:19], 0 offen offset:16")
    a(f"v_add_u32 v6, {XNT_STRIDE}, v6")
    a("buffer_store_dwordx4 v[56:59], v6, s[16:19], 0 offen")
    a("buffer_store_dwordx4 v[60:63], v6, s[16:19], 0 offen offset:16")
    S1(a); a("s_waitcnt vmcnt(0)"); S1(a); S1.dump(a,0)
    a("s_endpgm")
    a("K1_KGEN:")
    S1b(a)
    a(f"s_sub_u32 s3, s2, {NLN}")
    a("s_load_dwordx8 s[4:11], s[0:1], 8")
    a("s_load_dwordx2 s[12:13], s[0:1], 40")
    a("s_load_dwordx2 s[14:15], s[0:1], 104")
    a("v_and_b32 v1, 15, v0")
    a("v_bfe_u32 v2, v0, 4, 2")
    a("v_lshrrev_b32 v3, 6, v0")
    a("v_lshrrev_b32 v4, 4, v0")
    a("v_lshlrev_b32 v4, 4, v4")
    a("s_lshl_b32 s16, s3, 8")
    a("v_add_u32 v4, s16, v4")
    a("s_waitcnt lgkmcnt(0)")
    srd(a,20,4,5,131072); srd(a,24,6,7,131072); srd(a,28,8,9,131072); srd(a,32,10,11,131072)
    a("buffer_load_dwordx4 v[8:11], v4, s[20:23], 0 offen")
    a("buffer_load_dwordx4 v[12:15], v4, s[24:27], 0 offen")
    a("buffer_load_dwordx4 v[16:19], v4, s[28:31], 0 offen")
    a("buffer_load_dwordx4 v[20:23], v4, s[32:35], 0 offen")
    a("s_lshl_b32 s16, s3, 1")
    a("s_and_b32 s17, s16, 0xfffffffc")
    a("s_load_dword s18, s[12:13], s17")
    srd(a,36,14,15,2<<20,add=WS_KRH); srd(a,40,14,15,2<<20,add=WS_KRL)
    a("v_lshlrev_b32 v5, 3, v1")
    a("v_cvt_f32_u32 v24, v5")
    a("v_and_b32 v5, 7, v1")
    a("v_lshrrev_b32 v6, 3, v1")
    a("v_lshl_add_u32 v5, v6, 7, v5")
    a("v_cvt_f32_u32 v25, v5")
    a("v_lshrrev_b32 v5, 2, v1")
    a("v_lshlrev_b32 v5, 7, v5")
    a("v_and_b32 v6, 3, v1")
    a("v_lshl_add_u32 v5, v6, 1, v5")
    a("v_add_u32 v5, 0x100, v5")
    a("v_subrev_u32 v6, 8, v1")
    a("v_lshrrev_b32 v7, 1, v6")
    a("v_lshlrev_b32 v7, 7, v7")
    a("v_and_b32 v6, 1, v6")
    a("v_lshl_add_u32 v7, v6, 2, v7")
    a("v_add_u32 v7, 0x200, v7")
    a("v_cmp_gt_u32 vcc, 8, v1")
    a("v_cndmask_b32 v5, v7, v5, vcc")
    a("v_cvt_f32_u32 v26, v5")
    a("v_lshlrev_b32 v5, 7, v1")
    a("v_add_u32 v5, 0x400, v5")
    a("v_cvt_f32_u32 v27, v5")
    a("v_mul_u32_u24 v28, 0xc00, v3")
    a("v_and_b32 v5, 1, v2")
    a("v_lshlrev_b32 v5, 2, v5")
    a("v_lshrrev_b32 v6, 1, v2")
    a("v_lshl_add_u32 v5, v6, 7, v5")
    a("v_lshl_add_u32 v5, v1, 3, v5")
    a("v_lshl_add_u32 v29, v5, 2, v28")
    a("v_lshlrev_b32 v5, 6, v2")
    a("v_lshl_add_u32 v6, v1, 2, v5")
    a("v_add_u32 v6, 256, v6")
    a("v_lshl_add_u32 v7, v1, 1, v5")
    a("v_add_u32 v7, 256, v7")
    a("v_cmp_gt_u32 vcc, 2, v2")
    a("v_cndmask_b32 v6, v7, v6, vcc")
    a("v_lshl_add_u32 v30, v6, 2, v28")
    a("v_mov_b32 v6, 128")
    a("v_cndmask_b32 v6, v6, 8, vcc")
    a("v_add_u32 v31, v30, v6")
    a("v_add_u32 v6, v5, v1")
    a("v_add_u32 v6, 512, v6")
    a("v_lshl_add_u32 v32, v6, 2, v28")
    for i in range(12): a(f"v_mov_b32 v{36+i}, 0")
    a("s_mov_b32 s44, 0x3fb8aa3b")
    a("s_mov_b32 s45, 0xffff0000")
    a("s_mov_b32 s46, 0x3e22f983")
    a("s_waitcnt lgkmcnt(0)")
    a("s_and_b32 s16, s16, 2")
    a("s_lshl_b32 s16, s16, 3")
    a("s_lshr_b32 s18, s18, s16")
    a("s_lshl_b32 s18, s18, 16")
    a("v_mov_b32 v33, s18")
    a("v_mul_f32 v33, s44, v33")
    a("v_exp_f32 v33, v33")
    a("v_cvt_pk_bf16_f32 v33, v33, v33")
    a("v_and_b32 v33, s45, v33")
    a("v_add_f32 v34, v33, v33")
    S1b(a)
    a("s_waitcnt vmcnt(0)")
    S1b(a)
    for n in range(8):
        q=n>>1
        def unp(dst,src):
            if n&1: a(f"v_and_b32 v{dst}, s45, v{src+q}")
            else: a(f"v_lshlrev_b32 v{dst}, 16, v{src+q}")
        unp(50,8); unp(51,12); unp(52,16); unp(53,20)
        a("v_mul_f32 v50, s44, v50")
        a("v_exp_f32 v50, v50")
        a("v_mul_f32 v51, v51, v33")
        a("v_mul_f32 v52, v52, v34")
        a("v_cvt_pk_bf16_f32 v50, v50, v50")
        a("v_and_b32 v50, s45, v50")
        a("v_mul_f32 v53, v53, v34")
        a("v_mul_f32 v50, v50, v33")
        a("v_mul_f32 v51, s46, v51")
        a("v_mul_f32 v50, s44, v50")
        for k in range(4):
            t=24+k
            a(f"v_mul_f32 v{54+k}, -v50, v{t}")
            a(f"v_mul_f32 v{58+k}, v51, v{t}")
        for k in range(4):
            a(f"v_exp_f32 v{54+k}, v{54+k}")
            a(f"v_fract_f32 v{58+k}, v{58+k}")
        for k in range(4):
            a(f"v_cos_f32 v{62+k}, v{58+k}")
            a(f"v_sin_f32 v{66+k}, v{58+k}")
        for k in range(4):
            a(f"v_mul_f32 v{62+k}, v{62+k}, v{54+k}")
            a(f"v_mul_f32 v{66+k}, v{66+k}, v{54+k}")
        a("v_mul_f32 v70, v52, v62")
        a("v_mul_f32 v71, v52, v66")
        a("v_fma_f32 v70, -v53, v66, v70")
        a("v_fma_f32 v71, v53, v62, v71")
        a("v_sub_f32 v71, 0, v71")
        for tau in range(3):
            a(f"v_mfma_f32_16x16x4_f32 v[{36+4*tau}:{39+4*tau}], v{63+tau}, v70, v[{36+4*tau}:{39+4*tau}]")
            a(f"v_mfma_f32_16x16x4_f32 v[{36+4*tau}:{39+4*tau}], v{67+tau}, v71, v[{36+4*tau}:{39+4*tau}]")
    S1b(a)
    for i in range(4): a(f"ds_write_b32 v29, v{36+i} offset:{4*i}")
    a("ds_write_b32 v30, v40"); a("ds_write_b32 v30, v41 offset:4")
    a("ds_write_b32 v31, v42"); a("ds_write_b32 v31, v43 offset:4")
    for i in range(4): a(f"ds_write_b32 v32, v{44+i} offset:{64*i}")
    a("v_lshlrev_b32 v5, 3, v0")
    a("v_sub_u32 v5, 0x7ff, v5")
    a("s_movk_i32 s47, 0xbd80")
    for e in range(0,8,2):
        a(f"v_subrev_u32 v6, {e}, v5")
        a(f"v_subrev_u32 v7, {e+1}, v5")
        a(f"v_cvt_f32_u32 v72, v6")
        a(f"v_cvt_f32_u32 v73, v7")
        a(f"v_cvt_pk_bf16_f32 v72, v72, v73")
        a(f"v_lshrrev_b32 v73, 16, v72")
        a(f"v_and_b32 v72, 0xffff, v72")
        a(f"v_add_u32 v72, s47, v72")
        a(f"v_add_u32 v73, s47, v73")
        a(f"v_cmp_gt_u32 vcc, 0x80, v6")
        a(f"v_cndmask_b32 v72, v72, v6, vcc")
        a(f"v_cmp_gt_u32 vcc, 0x80, v7")
        a(f"v_cndmask_b32 v73, v73, v7, vcc")
        a(f"v_lshlrev_b32 v{76+e}, 2, v72")
        a(f"v_lshlrev_b32 v{77+e}, 2, v73")
    a("s_waitcnt lgkmcnt(0)")
    a("s_barrier")
    for e in range(8):
        for w in range(4):
            a(f"ds_read_b32 v{84+4*e+w}, v{76+e} offset:{3072*w}")
    a("s_waitcnt lgkmcnt(0)")
    for e in range(8):
        b=84+4*e
        a(f"v_add_f32 v{b}, v{b}, v{b+1}")
        a(f"v_add_f32 v{b+2}, v{b+2}, v{b+3}")
        a(f"v_add_f32 v{b}, v{b}, v{b+2}")
    for p in range(4):
        x0=84+8*p; x1=84+8*p+4
        a(f"v_cvt_pk_bf16_f32 v{120+p}, v{x0}, v{x1}")
        a(f"v_lshlrev_b32 v72, 16, v{120+p}")
        a(f"v_and_b32 v73, s45, v{120+p}")
        a(f"v_sub_f32 v72, v{x0}, v72")
        a(f"v_sub_f32 v73, v{x1}, v73")
        a(f"v_cvt_pk_bf16_f32 v{124+p}, v72, v73")
    S1b(a)
    a("s_lshl_b32 s16, s3, 12")
    a("v_lshlrev_b32 v5, 4, v0")
    a("v_add_u32 v5, s16, v5")
    a("buffer_store_dwordx4 v[120:123], v5, s[36:39], 0 offen")
    a("buffer_store_dwordx4 v[124:127], v5, s[40:43], 0 offen")
    if S1b.n:
        a("s_waitcnt vmcnt(0)"); S1b(a); a("s_cmp_ge_u32 s3, 256"); a("s_cbranch_scc1 K1_SKIP"); a("s_mov_b32 s68, s2"); a("s_mov_b32 s69, s3"); a("s_mov_b32 s2, s3"); S1b.dump(a,1); a("s_mov_b32 s2, s68"); a("s_mov_b32 s3, s69"); a("K1_SKIP:")
    srd(a,48,14,15,XNT_SIZE,add=WS_XNT)
    a(f"s_mul_i32 s16, s3, {XNT_STRIDE}")
    a("v_and_b32 v5, 1, v0")
    a("v_lshlrev_b32 v5, 4, v5")
    a("v_bfe_u32 v6, v0, 1, 1")
    a("v_mul_u32_u24 v6, 4128, v6")
    a("v_add3_u32 v5, v5, v6, s16")
    for i in range(4): a(f"v_mov_b32 v{8+i}, 0")
    a("v_cmp_gt_u32 vcc, 4, v0")
    a("s_and_saveexec_b64 s[52:53], vcc")
    a("s_cbranch_execz K1_END")
    a("buffer_store_dwordx4 v[8:11], v5, s[48:51], 0 offen")
    a("K1_END:")
    a("s_endpgm")
    return a.render(), dict(name="k1_kernel", grid=NLN+512, block=256, lds=16384, vgpr=128, sgpr=100)
```

```python
import os, sys
from asmlib import Asm
MODE=os.environ.get("MODE","mega")
STAMPS=bool(int(os.environ.get("STAMPS","0")))
MEGA = MODE=="mega"
SC = " sc1" if MEGA else ""
WS_XN=0; WS_XNT=2<<20; WS_YT=9<<20; WS_H=16<<20; WS_FL=12<<20
XNT_STRIDE=4160; XNT_SIZE=512*4160
X,XN,XNT,HH,YT,WG,WU,WD,OUT,DSK,DBG,FL=8,12,16,20,24,28,32,36,40,44,48,4
GSTR=960; MATB=8*GSTR; STG=2*MATB; NSTB=5
BRING=0; ARING=NSTB*STG; ASLOT=16384; NSTA=3
KRB=4608; KRBASE=163840-4*KRB
KTAB=ARING+NSTA*ASLOT; LNT=KTAB
COFF=[0,1,4,5,8,8,11,12]; CSTR=4352; UB=8*CSTR
CXCH=73728
WB=32768; EP=4*WB
class VmQ:
    def __init__(s): s.q=[]; s.tot=0; s.marks={}
    def issue(s,tag): s.q.append(tag); s.tot+=1
    def mark(s,tag): s.marks[tag]=s.tot
    def since(s,tag): return min(63,s.tot-s.marks[tag])
    def wait_for(s,a,pred):
        idx=[i for i,t in enumerate(s.q) if pred(t)]
        if not idx: return
        n=len(s.q)-1-max(idx)
        if n>63: n=63;
        a(f"s_waitcnt vmcnt({n})")
        s.q=s.q[len(s.q)-n:] if n>0 else []
    def drain(s,a): a("s_waitcnt vmcnt(0)"); s.q=[]
SKIP=int(os.environ.get("SKIP","0"))
class St:
    def __init__(s): s.n=0; s.k=0; s.names=[]
    def __call__(s,a,name=""):
        s.k+=1
        if STAMPS and s.k>SKIP and s.n<9:
            a(f"{os.environ.get('TIMER','s_memtime')} s[{84+2*s.n}:{85+2*s.n}]"); s.n+=1; s.names.append(name)
    def dump(s,a,kid):
        if not STAMPS: return
        a("s_load_dwordx2 s[4:5], s[0:1], 104")
        a("s_waitcnt lgkmcnt(0) vmcnt(0)")
        srd(a,52,4,5,1<<20,add=(48<<20)+(kid<<18))
        a("v_lshrrev_b32 v1, 6, v0"); a("s_lshl_b32 s3, s2, 8"); a("v_lshlrev_b32 v1, 6, v1"); a("v_add_u32 v1, s3, v1")
        for i in range(s.n):
            a(f"v_mov_b32 v2, s{84+2*i}"); a(f"buffer_store_dword v2, v1, s[52:55], 0 offen offset:{4*i}")
        print("stamps:",s.names); s.n=0
def srd(a,d,lo,hi,size,add=None):
    if add: a(f"s_add_u32 s{d}, s{lo}, {add}"); a(f"s_addc_u32 s{d+1}, s{hi}, 0")
    else: a(f"s_mov_b32 s{d}, s{lo}"); a(f"s_mov_b32 s{d+1}, s{hi}")
    a(f"s_and_b32 s{d+1}, s{d+1}, 0xffff"); a(f"s_mov_b32 s{d+2}, {size}"); a(f"s_mov_b32 s{d+3}, 0x00020000")
R=lambda b,n=4: f"v[{b}:{b+n-1}]"
S4=lambda b: f"s[{b}:{b+3}]"
_lab=[0]
def lab(p): _lab[0]+=1; return f"{p}_{_lab[0]}"

def setup(a):
    a("s_load_dwordx16 s[68:83], s[0:1], 0")
    a("s_load_dwordx8 s[52:59], s[0:1], 64")
    a("s_load_dwordx4 s[60:63], s[0:1], 96")
    a("v_and_b32 v1, 15, v0"); a("v_bfe_u32 v2, v0, 4, 2"); a("v_lshrrev_b32 v3, 6, v0"); a("v_and_b32 v4, 63, v0")
    a("s_waitcnt lgkmcnt(0)")
    srd(a,X,68,69,2<<20); srd(a,XN,62,63,2<<20); srd(a,XNT,62,63,XNT_SIZE,add=WS_XNT); srd(a,HH,62,63,2048*3584,add=WS_H)
    srd(a,YT,62,63,2<<20,add=WS_YT); srd(a,WG,52,53,512*3584); srd(a,WU,54,55,512*3584); srd(a,WD,56,57,1792*1024)
    srd(a,OUT,58,59,2<<20); srd(a,DSK,80,81,1024); srd(a,DBG,60,61,256); srd(a,FL,62,63,32768,add=WS_FL)
    a("v_readfirstlane_b32 s68, v3")
def token_publish(a):
    L=lab("TK")
    a("s_cmp_lg_u32 s2, 0"); a(f"s_cbranch_scc1 {L}"); a("s_cmp_lg_u32 s68, 0"); a(f"s_cbranch_scc1 {L}")
    a("s_memrealtime s[64:65]"); a("s_waitcnt lgkmcnt(0)"); a("s_or_b32 s64, s64, 1")
    a("v_mov_b32 v5, s64"); a("v_mov_b32 v6, 0"); a("s_mov_b64 exec, 1")
    a(f"buffer_store_dword v5, v6, {S4(DBG)}, 0 offen sc1"); a("s_mov_b64 exec, -1")
    a(f"{L}:")
def token_issue(a,vq):
    L=lab("TI"); a("v_mov_b32 v112, 0"); a("s_cmp_lg_u32 s68, 0"); a(f"s_cbranch_scc1 {L}")
    a(f"buffer_load_dword v113, v112, {S4(DBG)}, 0 offen sc1"); a(f"{L}:"); vq.mark(("TK",0))
def token_get(a,vq):
    L=lab("TG"); E=lab("TGE")
    a("s_cmp_lg_u32 s68, 0"); a(f"s_cbranch_scc1 {E}")
    a(f"s_waitcnt vmcnt({vq.since(('TK',0))})"); a("s_mov_b32 s66, 0")
    a(f"{L}:"); a("v_readfirstlane_b32 s83, v113"); a("s_add_u32 s66, s66, 1")
    a("s_cmp_lg_u32 s83, 0"); a(f"s_cbranch_scc1 {E}"); a("s_cmp_gt_u32 s66, 0x40000"); a(f"s_cbranch_scc1 {E}")
    a("s_sleep 8"); a(f"buffer_load_dword v113, v112, {S4(DBG)}, 0 offen sc1"); a("s_waitcnt vmcnt(0)"); a(f"s_branch {L}")
    a(f"{E}:")
def signal(a,vq,phase,tag):
    vq.wait_for(a,lambda t:t==tag); a("s_barrier")
    a("v_mov_b32 v5, s83"); a("s_lshl_b32 s64, s2, 2"); a(f"s_add_u32 s64, s64, {phase*8192}"); a("v_lshlrev_b32 v6, 10, v0"); a("v_add_u32 v6, s64, v6")
    L=lab("SIG")
    a("v_cmp_gt_u32 vcc, 8, v0"); a("s_and_saveexec_b64 s[64:65], vcc"); a(f"s_cbranch_execz {L}")
    a(f"buffer_store_dword v5, v6, {S4(FL)}, 0 offen sc1")
    a(f"{L}:"); a("s_mov_b64 exec, s[64:65]")
def poll_issue(a,vq,voff,vdst,tag,nd=1):
    L=lab("PI")
    a("s_cmp_lg_u32 s68, 0"); a(f"s_cbranch_scc1 {L}")
    a(f"buffer_load_dword{'x4' if nd==4 else ''} {R(vdst,4) if nd==4 else 'v%d'%vdst}, v{voff}, {S4(FL)}, 0 offen sc1")
    a(f"{L}:")
    vq.mark(tag)
def poll_check(a,vq,voff,vdst,tag,nd=1):
    L=lab("POLL"); E=lab("POLLE")
    a("s_cmp_lg_u32 s68, 0"); a(f"s_cbranch_scc1 {E}")
    a(f"s_waitcnt vmcnt({vq.since(tag)})")
    a("s_mov_b32 s66, 0")
    a(f"{L}:")
    if nd==4:
        for k in range(4): a(f"v_xor_b32 v{vdst+k}, s83, v{vdst+k}")
        a(f"v_or3_b32 v{vdst}, v{vdst}, v{vdst+1}, v{vdst+2}"); a(f"v_or_b32 v{vdst}, v{vdst}, v{vdst+3}"); a(f"v_cmp_ne_u32 vcc, 0, v{vdst}")
    else: a(f"v_cmp_ne_u32 vcc, s83, v{vdst}")
    a("s_add_u32 s66, s66, 1"); a("s_nop 1")
    a("s_cmp_eq_u64 vcc, 0"); a(f"s_cbranch_scc1 {E}")
    a("s_cmp_gt_u32 s66, 0x40000"); a(f"s_cbranch_scc1 {E}")
    a("s_sleep 4")
    a(f"buffer_load_dword{'x4' if nd==4 else ''} {R(vdst,4) if nd==4 else 'v%d'%vdst}, v{voff}, {S4(FL)}, 0 offen sc1")
    a("s_waitcnt vmcnt(0)")
    a(f"s_branch {L}")
    a(f"{E}:"); a("s_barrier")
def p0_loads(a,vq):
    a("s_lshl_b32 s3, s2, 13")
    a("v_lshlrev_b32 v110, 11, v3"); a("v_lshl_add_u32 v110, v4, 4, v110")
    a("v_add_u32 v111, s3, v110"); a(f"v_add_u32 v110, {LNT}, v110")
    for r in range(2):
        a(f"buffer_load_dwordx4 {R(16+4*r)}, v111, {S4(X)}, 0 offen offset:{1024*r}"); vq.issue(("X",r))
def p0_compute(a,vq):
    NR=2
    F=lambda r,i: 130+8*r+i
    S=lambda r: 64+r; M=lambda r: 84+r
    a("s_mov_b32 s69, 0xffff0000"); a("v_mov_b32 v80, 0x3b000000")
    for r in range(NR):
        vq.wait_for(a,lambda t:t==("X",r))
        for i in range(4):
            a(f"v_lshlrev_b32 v{F(r,2*i)}, 16, v{16+4*r+i}"); a(f"v_and_b32 v{F(r,2*i+1)}, s69, v{16+4*r+i}")
        a(f"v_add_f32 v{S(r)}, v{F(r,0)}, v{F(r,1)}"); a(f"v_add_f32 v70, v{F(r,2)}, v{F(r,3)}"); a(f"v_add_f32 v71, v{F(r,4)}, v{F(r,5)}"); a(f"v_add_f32 v72, v{F(r,6)}, v{F(r,7)}")
        a(f"v_add_f32 v{S(r)}, v{S(r)}, v70"); a("v_add_f32 v71, v71, v72"); a(f"v_add_f32 v{S(r)}, v{S(r)}, v71")
    def red():
        for m in ("row_shr:1 row_mask:0xf bank_mask:0xf","row_shr:2 row_mask:0xf bank_mask:0xf","row_shr:4 row_mask:0xf bank_mask:0xf","row_shr:8 row_mask:0xf bank_mask:0xf","row_bcast:15 row_mask:0xa bank_mask:0xf","row_bcast:31 row_mask:0xc bank_mask:0xf"):
            for r in range(NR): a(f"v_add_f32_dpp v{S(r)}, v{S(r)}, v{S(r)} {m}")
    red()
    for r in range(NR): a(f"v_readlane_b32 s{64+r}, v{S(r)}, 63")
    for r in range(NR): a(f"v_mul_f32 v{M(r)}, s{64+r}, v80")
    for i in range(8):
        for r in range(NR):
            a(f"v_sub_f32 v{70+r}, v{F(r,i)}, v{M(r)}")
        for r in range(NR):
            a(f"v_mul_f32 v{S(r)}, v{70+r}, v{70+r}" if i==0 else f"v_fmac_f32 v{S(r)}, v{70+r}, v{70+r}")
    red()
    for r in range(NR): a(f"v_readlane_b32 s{64+r}, v{S(r)}, 63")
    a("s_mov_b32 s66, 0x3727c5ac")
    for r in range(NR):
        t=70+r
        a(f"v_mul_f32 v{t}, s{64+r}, v80"); a(f"v_cvt_pk_bf16_f32 v{72+r}, v{M(r)}, v{t}")
        a(f"v_lshlrev_b32 v{M(r)}, 16, v{72+r}"); a(f"v_and_b32 v{t}, s69, v{72+r}"); a(f"v_add_f32 v{t}, s66, v{t}")
        a(f"v_cvt_pk_bf16_f32 v{t}, v{t}, v{t}"); a(f"v_and_b32 v{t}, s69, v{t}"); a(f"v_sqrt_f32 v{t}, v{t}")
        a(f"v_cvt_pk_bf16_f32 v{t}, v{t}, v{t}"); a(f"v_and_b32 v{88+r}, s69, v{t}"); a(f"v_rcp_f32 v{92+r}, v{88+r}")
    for r in range(NR):
        for i in range(4):
            a(f"v_sub_f32 v70, v{F(r,2*i)}, v{M(r)}"); a(f"v_sub_f32 v71, v{F(r,2*i+1)}, v{M(r)}")
            a("v_cvt_pk_bf16_f32 v72, v70, v71"); a("v_lshlrev_b32 v70, 16, v72"); a("v_and_b32 v71, s69, v72")
            a(f"v_mul_f32 v73, v70, v{92+r}"); a(f"v_mul_f32 v74, v71, v{92+r}")
            a(f"v_fma_f32 v75, -v73, v{88+r}, v70"); a(f"v_fma_f32 v76, -v74, v{88+r}, v71")
            a(f"v_fmac_f32 v73, v75, v{92+r}"); a(f"v_fmac_f32 v74, v76, v{92+r}")
            a(f"v_cvt_pk_bf16_f32 v{16+4*r+i}, v73, v74")
        a(f"buffer_store_dwordx4 {R(16+4*r)}, v111, {S4(XN)}, 0 offen offset:{1024*r}{SC}"); vq.issue(("S",0))
        a(f"ds_write_b128 v110, {R(16+4*r)} offset:{1024*r}")
    a("s_waitcnt lgkmcnt(0)"); a("s_barrier")
    a("v_lshlrev_b32 v7, 2, v0"); a(f"v_add_u32 v7, {LNT}, v7")
    for r in range(8): a(f"ds_read_b32 v{150+r}, v7 offset:{1024*r}")
    a("s_mov_b32 s64, 0x05040100"); a("s_mov_b32 s65, 0x07060302")
    a(f"v_mul_u32_u24 v8, {2*XNT_STRIDE}, v0")
    a("s_lshl_b32 s3, s2, 4"); a("s_add_u32 s3, s3, 32"); a("v_add_u32 v8, s3, v8")
    a(f"s_movk_i32 s66, {XNT_STRIDE}")
    a("s_waitcnt lgkmcnt(0)")
    for k in range(4):
        a(f"v_perm_b32 v{160+k}, v{151+2*k}, v{150+2*k}, s64"); a(f"v_perm_b32 v{164+k}, v{151+2*k}, v{150+2*k}, s65")
    a(f"buffer_store_dwordx4 v[160:163], v8, {S4(XNT)}, 0 offen{SC}"); vq.issue(("S",0))
    a(f"buffer_store_dwordx4 v[164:167], v8, {S4(XNT)}, s66 offen{SC}"); vq.issue(("S",0))
    a(f"s_mul_i32 s3, s2, {2*XNT_STRIDE}")
    a("v_and_b32 v7, 1, v0"); a("v_lshlrev_b32 v7, 4, v7"); a("v_bfe_u32 v8, v0, 1, 1"); a("v_mul_u32_u24 v8, 4128, v8")
    a("v_bfe_u32 v9, v0, 2, 1"); a(f"v_mul_u32_u24 v9, {XNT_STRIDE}, v9"); a("v_add3_u32 v7, v7, v8, v9"); a("v_add_u32 v7, s3, v7")
    for i in range(4): a(f"v_mov_b32 v{168+i}, 0")
    L=lab("ZP")
    a("v_cmp_gt_u32 vcc, 8, v0"); a("s_and_saveexec_b64 s[64:65], vcc"); a(f"s_cbranch_execz {L}")
    a(f"buffer_store_dwordx4 v[168:171], v7, {S4(XNT)}, 0 offen{SC}")
    a(f"{L}:"); a("s_mov_b64 exec, s[64:65]")
def p1_loads(a,vq):
    srd(a,52,70,71,131072); srd(a,56,72,73,131072); srd(a,60,74,75,131072); srd(a,64,76,77,131072)
    a("v_lshrrev_b32 v7, 4, v0"); a("v_lshlrev_b32 v7, 4, v7"); a("s_lshl_b32 s3, s2, 9"); a("v_add_u32 v7, s3, v7")
    for dd in range(2):
        for k in range(4):
            a(f"buffer_load_dwordx4 {R(224+16*dd+4*k)}, v7, {S4(52+4*k)}, 0 offen offset:{256*dd}"); vq.issue(("P",dd))
    a("s_lshl_b32 s3, s2, 2")
    a("s_load_dword s82, s[78:79], s3")
def p1_setup(a):
    a("v_lshlrev_b32 v5, 3, v1"); a("v_cvt_f32_u32 v24, v5")
    a("v_and_b32 v5, 7, v1"); a("v_lshrrev_b32 v6, 3, v1"); a("v_lshl_add_u32 v5, v6, 7, v5"); a("v_cvt_f32_u32 v25, v5")
    a("v_lshrrev_b32 v5, 2, v1"); a("v_lshlrev_b32 v5, 7, v5"); a("v_and_b32 v6, 3, v1"); a("v_lshl_add_u32 v5, v6, 1, v5"); a("v_add_u32 v5, 0x100, v5")
    a("v_subrev_u32 v6, 8, v1"); a("v_lshrrev_b32 v7, 1, v6"); a("v_lshlrev_b32 v7, 7, v7"); a("v_and_b32 v6, 1, v6"); a("v_lshl_add_u32 v7, v6, 2, v7"); a("v_add_u32 v7, 0x200, v7")
    a("v_cmp_gt_u32 vcc, 8, v1"); a("v_cndmask_b32 v5, v7, v5, vcc"); a("v_cvt_f32_u32 v26, v5")
    a("v_lshlrev_b32 v5, 7, v1"); a("v_add_u32 v5, 0x400, v5"); a("v_cvt_f32_u32 v27, v5")
    a("v_mul_u32_u24 v28, 0xc00, v3"); a(f"v_add_u32 v28, {KTAB}, v28")
    a("v_and_b32 v5, 1, v2"); a("v_lshlrev_b32 v5, 2, v5"); a("v_lshrrev_b32 v6, 1, v2"); a("v_lshl_add_u32 v5, v6, 7, v5"); a("v_lshl_add_u32 v5, v1, 3, v5")
    a("v_lshl_add_u32 v29, v5, 2, v28")
    a("v_lshlrev_b32 v5, 6, v2"); a("v_lshl_add_u32 v6, v1, 2, v5"); a("v_add_u32 v6, 256, v6"); a("v_lshl_add_u32 v7, v1, 1, v5"); a("v_add_u32 v7, 256, v7")
    a("v_cmp_gt_u32 vcc, 2, v2"); a("v_cndmask_b32 v6, v7, v6, vcc"); a("v_lshl_add_u32 v30, v6, 2, v28")
    a("v_mov_b32 v6, 128"); a("v_cndmask_b32 v6, v6, 8, vcc"); a("v_add_u32 v31, v30, v6")
    a("v_add_u32 v6, v5, v1"); a("v_add_u32 v6, 512, v6"); a("v_lshl_add_u32 v32, v6, 2, v28")
    a("s_mov_b32 s77, 0x3fb8aa3b"); a("s_mov_b32 s78, 0xffff0000"); a("s_mov_b32 s79, 0x3e22f983")
    a("v_lshlrev_b32 v5, 3, v0"); a("v_sub_u32 v5, 0x7ff, v5"); a("s_movk_i32 s67, 0xbd80")
    GI=100
    for e in range(0,8,2):
        a(f"v_subrev_u32 v6, {e}, v5"); a(f"v_subrev_u32 v7, {e+1}, v5"); a("v_cvt_f32_u32 v72, v6"); a("v_cvt_f32_u32 v73, v7")
        a("v_cvt_pk_bf16_f32 v72, v72, v73"); a("v_lshrrev_b32 v73, 16, v72"); a("v_and_b32 v72, 0xffff, v72")
        a("v_add_u32 v72, s67, v72"); a("v_add_u32 v73, s67, v73")
        a("v_cmp_gt_u32 vcc, 0x80, v6"); a("v_cndmask_b32 v72, v72, v6, vcc"); a("v_cmp_gt_u32 vcc, 0x80, v7"); a("v_cndmask_b32 v73, v73, v7, vcc")
        a(f"v_lshlrev_b32 v{GI+e}, 2, v72"); a(f"v_lshlrev_b32 v{GI+1+e}, 2, v73")
    for e in range(8): a(f"v_add_u32 v{GI+e}, {KTAB}, v{GI+e}")
    for i in range(4): a(f"v_mov_b32 v{128+i}, 0")
    a("v_lshrrev_b32 v5, 5, v0"); a(f"v_mul_u32_u24 v5, {KRB}, v5"); a("v_and_b32 v6, 31, v0"); a("v_lshl_add_u32 v5, v6, 4, v5"); a(f"v_add_u32 v5, {KRBASE+4096}, v5")
    L=lab("ZT"); a("v_cmp_gt_u32 vcc, 0x80, v0"); a("s_and_saveexec_b64 s[52:53], vcc"); a(f"s_cbranch_execz {L}")
    a("ds_write_b128 v5, v[128:131]"); a(f"{L}:"); a("s_mov_b64 exec, s[52:53]")
    a("v_lshlrev_b32 v108, 4, v0"); a(f"v_add_u32 v108, {KRBASE}, v108")
GI=100
def p1(a,vq,hooks={}):
    a("s_waitcnt lgkmcnt(0)")
    for dd in range(2):
        a("s_lshl_b32 s3, s82, 16" if dd==0 else "s_and_b32 s3, s82, 0xffff0000")
        D=33+2*dd
        a(f"v_mov_b32 v{D}, s3"); a(f"v_mul_f32 v{D}, s77, v{D}"); a(f"v_exp_f32 v{D}, v{D}"); a(f"v_cvt_pk_bf16_f32 v{D}, v{D}, v{D}"); a(f"v_and_b32 v{D}, s78, v{D}"); a(f"v_add_f32 v{D+1}, v{D}, v{D}")
    ACCK=lambda dd: 38 if dd==0 else 50
    for dd in range(2):
        for i in range(12): a(f"v_mov_b32 v{ACCK(dd)+i}, 0")
    def valu(dd,n):
        P=224+16*dd; q=n>>1; T=132+22*(n&3); D=33+2*dd; o=[]
        def unp(dst,src): o.append(f"v_and_b32 v{dst}, s78, v{src+q}" if n&1 else f"v_lshlrev_b32 v{dst}, 16, v{src+q}")
        unp(T,P); unp(T+1,P+4); unp(T+2,P+8); unp(T+3,P+12)
        o+=[f"v_mul_f32 v{T}, s77, v{T}", f"v_exp_f32 v{T}, v{T}", f"v_mul_f32 v{T+1}, v{T+1}, v{D}", f"v_mul_f32 v{T+2}, v{T+2}, v{D+1}",
            f"v_cvt_pk_bf16_f32 v{T}, v{T}, v{T}", f"v_and_b32 v{T}, s78, v{T}", f"v_mul_f32 v{T+3}, v{T+3}, v{D+1}", f"v_mul_f32 v{T}, v{T}, v{D}",
            f"v_mul_f32 v{T+1}, s79, v{T+1}", f"v_mul_f32 v{T}, s77, v{T}"]
        for k in range(4): o+=[f"v_mul_f32 v{T+4+k}, -v{T}, v{24+k}", f"v_mul_f32 v{T+8+k}, v{T+1}, v{24+k}"]
        for k in range(4): o+=[f"v_exp_f32 v{T+4+k}, v{T+4+k}", f"v_fract_f32 v{T+8+k}, v{T+8+k}"]
        for k in range(4): o+=[f"v_cos_f32 v{T+12+k}, v{T+8+k}", f"v_sin_f32 v{T+16+k}, v{T+8+k}"]
        for k in range(4): o+=[f"v_mul_f32 v{T+12+k}, v{T+12+k}, v{T+4+k}", f"v_mul_f32 v{T+16+k}, v{T+16+k}, v{T+4+k}"]
        o+=[f"v_mul_f32 v{T+20}, v{T+2}, v{T+12}", f"v_mul_f32 v{T+21}, v{T+2}, v{T+16}", f"v_fma_f32 v{T+20}, -v{T+3}, v{T+16}, v{T+20}", f"v_fma_f32 v{T+21}, v{T+3}, v{T+12}, v{T+21}", f"v_sub_f32 v{T+21}, 0, v{T+21}"]
        return o
    def mfmas(dd,n):
        T=132+22*(n&3); A=ACCK(dd); o=[]
        for part in range(2):
            for tau in range(3):
                o.append(f"v_mfma_f32_16x16x4_f32 {R(A+4*tau)}, v{T+13+4*part+tau}, v{T+20+part}, {R(A+4*tau)}")
        return o
    def gather(dd):
        B0=64
        for e in range(8):
            for w in range(4): a(f"ds_read_b32 v{B0+4*e+w}, v{GI+e} offset:{3072*w}")
        a("s_waitcnt lgkmcnt(0)")
        for e in range(8):
            b=B0+4*e; a(f"v_add_f32 v{b}, v{b}, v{b+1}"); a(f"v_add_f32 v{b+2}, v{b+2}, v{b+3}"); a(f"v_add_f32 v{b}, v{b}, v{b+2}")
        O=110
        for p in range(4):
            x0=B0+8*p; x1=x0+4
            a(f"v_cvt_pk_bf16_f32 v{O+p}, v{x0}, v{x1}"); a(f"v_lshlrev_b32 v{O+8}, 16, v{O+p}"); a(f"v_and_b32 v{O+9}, s78, v{O+p}")
            a(f"v_sub_f32 v{O+8}, v{x0}, v{O+8}"); a(f"v_sub_f32 v{O+9}, v{x1}, v{O+9}"); a(f"v_cvt_pk_bf16_f32 v{O+4+p}, v{O+8}, v{O+9}")
        a(f"ds_write_b128 v108, {R(O)} offset:{2*KRB*dd}"); a(f"ds_write_b128 v108, {R(O+4)} offset:{2*KRB*dd+KRB}")
    def tabwrite(dd):
        A=ACCK(dd)
        for i in range(4): a(f"ds_write_b32 v29, v{A+i} offset:{4*i}")
        a(f"ds_write_b32 v30, v{A+4}"); a(f"ds_write_b32 v30, v{A+5} offset:4"); a(f"ds_write_b32 v31, v{A+6}"); a(f"ds_write_b32 v31, v{A+7} offset:4")
        for i in range(4): a(f"ds_write_b32 v32, v{A+8+i} offset:{64*i}")
    pend=[]
    for idx in range(0,16,2):
        dd,n=idx>>3,idx&7
        if n==0: vq.wait_for(a,lambda t:t==("P",dd))
        if idx in hooks: hooks[idx]()
        o1=valu(dd,n); o2=valu(dd,n+1); o=[x for pr in zip(o1,o2) for x in pr]
        for k,ins in enumerate(o):
            a(ins)
            if pend and k%8==4: a(pend.pop(0))
        while pend: a(pend.pop(0))
        pend=mfmas(dd,n)+mfmas(dd,n+1)
        if idx==8:
            tabwrite(0); a("s_waitcnt lgkmcnt(0)"); a("s_barrier"); gather(0)
    while pend: a(pend.pop(0))
    a("s_waitcnt lgkmcnt(0)"); a("s_barrier")
    tabwrite(1); a("s_waitcnt lgkmcnt(0)"); a("s_barrier"); gather(1)
    if 99 in hooks: hooks[99]()
    a("s_waitcnt lgkmcnt(0)"); a("s_barrier")
def warm_w(a,vq):
    a("v_mul_u32_u24 v120, 0x5556, v0"); a("v_lshrrev_b32 v120, 16, v120")
    a("v_mul_u32_u24 v121, 3, v120"); a("v_sub_u32 v121, v0, v121")
    a("s_and_b32 s64, s70, 7"); a("s_mul_i32 s64, s64, 44"); a("s_add_u32 s64, s64, 160")
    a("v_add_u32 v120, s64, v120"); a("v_mul_u32_u24 v120, 3584, v120"); a("v_mul_u32_u24 v121, 110, v121"); a("v_and_b32 v121, 0xfffffffc, v121")
    a("s_mul_i32 s64, s71, 224"); a("v_add3_u32 v120, v120, v121, s64")
    L=lab("WW"); a("v_cmp_gt_u32 vcc, 132, v0"); a("s_and_saveexec_b64 s[64:65], vcc"); a(f"s_cbranch_execz {L}")
    a(f"buffer_load_dword a62, v120, {S4(WG)}, 0 offen"); a(f"buffer_load_dword a63, v120, {S4(WU)}, 0 offen")
    a(f"{L}:"); a("s_mov_b64 exec, s[64:65]")
def warm_wd(a,vq,vt):
    a("s_lshr_b32 s64, s2, 6"); a("s_mul_i32 s64, s64, 448"); a("s_lshl_b32 s64, s64, 10")
    a("s_lshr_b32 s65, s2, 3"); a("s_and_b32 s65, s65, 7"); a("s_lshl_b32 s65, s65, 7"); a("s_add_u32 s64, s64, s65")
    a(f"v_lshlrev_b32 v{vt}, 10, v0"); a(f"v_add_u32 v{vt}, s64, v{vt}"); a("s_mov_b32 s64, 0x40000")
    a(f"buffer_load_dword a60, v{vt}, {S4(WD)}, 0 offen"); vq.issue(("W",0))
    L=lab("WD"); a("v_cmp_gt_u32 vcc, 192, v0"); a("s_and_saveexec_b64 s[64:65], vcc"); a(f"s_cbranch_execz {L}")
    a("s_mov_b32 s66, 0x40000"); a(f"buffer_load_dword a61, v{vt}, {S4(WD)}, s66 offen")
    a(f"{L}:"); a("s_mov_b64 exec, s[64:65]")
def g1_setup(a):
    a("s_and_b32 s64, s2, 7"); a("s_lshr_b32 s65, s2, 3")
    a("s_and_b32 s70, s64, 1"); a("s_lshl_b32 s70, s70, 3"); a("s_and_b32 s66, s65, 7"); a("s_add_u32 s70, s70, s66")
    a("s_lshr_b32 s71, s64, 1"); a("s_lshl_b32 s71, s71, 2"); a("s_lshr_b32 s66, s65, 3"); a("s_add_u32 s71, s71, s66")
    a("v_mul_u32_u24 v8, 0x2493, v4"); a("v_lshrrev_b32 v8, 17, v8"); a("v_mul_u32_u24 v9, 14, v8"); a("v_sub_u32 v9, v4, v9")
    a("v_mul_u32_u24 v8, 3584, v8"); a("v_lshl_add_u32 v8, v9, 4, v8"); a("s_mul_i32 s66, s71, 224"); a("v_add_u32 v10, s66, v8")
    a("s_mul_i32 s72, s68, 28672"); a(f"s_mul_i32 s73, s68, {2*GSTR}")
def g1_setup2(a):
    a(f"v_mul_u32_u24 v5, {2*GSTR}, v2"); a("v_lshrrev_b32 v6, 2, v1"); a("v_mul_u32_u24 v6, 224, v6"); a("v_and_b32 v7, 3, v0"); a("v_lshl_add_u32 v6, v7, 3, v6")
    a("v_add_u32 v11, v5, v6")
    a("v_lshrrev_b32 v5, 3, v4"); a("v_and_b32 v6, 7, v4"); a("s_lshl_b32 s66, s70, 7"); a("s_lshl_b32 s67, s68, 5"); a("s_add_u32 s66, s66, s67")
    a("v_add_u32 v7, s66, v5"); a("v_lshlrev_b32 v7, 10, v7"); a("v_xor_b32 v8, v6, v2"); a("v_lshl_add_u32 v12, v8, 4, v7"); a("v_xor_b32 v8, 4, v8"); a("v_lshl_add_u32 v13, v8, 4, v7")
    a("s_lshl_b32 s74, s68, 12"); a(f"s_add_u32 s74, s74, {ARING}")
    a("v_lshrrev_b32 v7, 1, v1"); a("v_xor_b32 v8, v2, v7"); a("v_lshlrev_b32 v9, 7, v1"); a("v_add_u32 v9, s74, v9")
    a("v_lshl_add_u32 v14, v8, 4, v9"); a("v_xor_b32 v8, 4, v8"); a("v_lshl_add_u32 v15, v8, 4, v9")
    a(f"v_add_u32 v8, {3*STG}, v11")
def g1_bdma_l(s):
    out=[]
    for mat in range(2):
        for gi in range(2):
            out.append(([f"s_add_u32 s66, s72, {s*114688+gi*14336}", f"s_add_u32 m0, s73, {BRING+(s%NSTB)*STG+mat*MATB+gi*GSTR}", "s_mov_b32 exec_hi, 0x00ffffff",
                         f"buffer_load_dwordx4 v10, {S4((WG,WU)[mat])}, s66 offen lds", "s_mov_b32 exec_hi, -1"],("B",s)))
    return out
def g1_adma_l(c):
    return [([f"s_mov_b32 s66, {q*8192+c*128}", f"s_add_u32 m0, s74, {(c%NSTA)*ASLOT+q*1024}", f"buffer_load_dwordx4 v{12+(q&1)}, {S4(XN)}, s66 offen{SC} lds"],("A",c)) for q in range(4)]
def emit_g(a,vq,g):
    for l in g[0]: a(l)
    vq.issue(g[1])
def g1_bdma(a,vq,s):
    for g in g1_bdma_l(s): emit_g(a,vq,g)
def g1_adma(a,vq,c):
    for g in g1_adma_l(c): emit_g(a,vq,g)
BF=lambda st,mat,j: 16+56*st+28*mat+4*j
AC=lambda rt,mat,j: 128+56*rt+28*mat+4*j
AF=lambda st,rt: 240+8*st+4*rt
def g1_reads(s):
    st=s&1; out=[]
    for rt in range(2):
        out.append(f"ds_read_b128 {R(AF(st,rt))}, v{14+(s&1)} offset:{((s>>1)%NSTA)*ASLOT+rt*2048}")
    for j in range(7):
        for mat in range(2):
            for h in range(2):
                b=BF(st,mat,j)+2*h
                out.append(f"ds_read_b64_tr_b16 {R(b,2)}, v{11 if (s%NSTB)<3 else 8} offset:{BRING+((s%NSTB)%3)*STG+mat*MATB+h*GSTR+32*j}")
    return out
def g1_main(a,vq,st_,hooks={}):
    for i in range(112): a(f"v_mov_b32 v{128+i}, 0")
    vq.wait_for(a,lambda t:t in(("B",0),("A",0)))
    a("s_barrier")
    st_(a,"g1_loop")
    for l in g1_reads(0): a(l)
    for s in range(16):
        st=s&1
        if s in (4,8,12): st_(a,'g1_s%d'%s)
        vq.wait_for(a,lambda t:t==("B",s+1) or t==("A",(s+1)>>1))
        a("s_waitcnt lgkmcnt(0)"); a("s_barrier")
        if s in hooks: hooks[s]()
        dm=[]
        if s+NSTB<16: dm+=g1_bdma_l(s+NSTB)
        if s>=1 and ((s-1)>>1)+NSTA<8: dm+=g1_adma_l(((s-1)>>1)+NSTA)[2*((s-1)&1):2*((s-1)&1)+2]
        nxt=g1_reads(s+1) if s<15 else []
        k=0
        if os.environ.get("EXP")=="nodma": dm=[]
        if os.environ.get("EXP")=="nods": nxt=[]
        if os.environ.get("EXP")=="nodmads": nxt=[]; dm=[]
        for j in range(7):
            for mat in range(2):
                for rt in range(2):
                    d=AC(rt,mat,j)
                    if os.environ.get("EXP")!="nomfma": a(f"v_mfma_f32_16x16x32_bf16 {R(d)}, {R(BF(st,mat,j))}, {R(AF(st,rt))}, {R(d)}")
                    if nxt: a(nxt.pop(0))
                    if nxt and j==0: a(nxt.pop(0))
                    if dm and k%4==1: emit_g(a,vq,dm.pop(0))
                    k+=1
        while dm: emit_g(a,vq,dm.pop(0))
def g1_epilogue(a,vq):
    a("s_mov_b32 s66, 0xffff0000"); a("s_mov_b32 s67, 0xbfb8aa3b")
    a("v_mul_u32_u24 v5, 240, v1"); a("v_lshl_add_u32 v5, v2, 3, v5"); a("v_add_u32 v5, s74, v5")
    a("s_lshl_b32 s64, s70, 7"); a("s_lshl_b32 s65, s68, 5"); a("s_add_u32 s64, s64, s65"); a("s_mul_i32 s64, s64, 3584"); a("s_mul_i32 s65, s71, 224"); a("s_add_u32 s75, s64, s65")
    a("s_add_u32 s76, s75, 57344")
    for i in range(4):
        a(f"v_add_u32 v6, {64*i}, v4"); a("v_mul_u32_u24 v7, 0x2493, v6"); a("v_lshrrev_b32 v7, 17, v7")
        a("v_mul_u32_u24 v9, 14, v7"); a("v_sub_u32 v9, v6, v9")
        a("v_mul_u32_u24 v6, 3584, v7"); a(f"v_lshl_add_u32 v{104+i}, v9, 4, v6")
        a("v_mul_u32_u24 v6, 240, v7"); a("v_lshl_add_u32 v6, v9, 4, v6"); a(f"v_add_u32 v{108+i}, s74, v6")
    def tile(rt,j,T):
        g=AC(rt,0,j); u=AC(rt,1,j)
        s1=[f"v_cvt_pk_bf16_f32 v{T}, v{g}, v{g+1}", f"v_cvt_pk_bf16_f32 v{T+1}, v{g+2}, v{g+3}",
            f"v_lshlrev_b32 v{T+2}, 16, v{T}", f"v_and_b32 v{T+3}, s66, v{T}", f"v_lshlrev_b32 v{T+4}, 16, v{T+1}", f"v_and_b32 v{T+5}, s66, v{T+1}"]+[f"v_mul_f32 v{T+6+k}, s67, v{T+2+k}" for k in range(4)]
        e=[f"v_exp_f32 v{T+6+k}, v{T+6+k}" for k in range(4)]
        s2=[f"v_cvt_pk_bf16_f32 v{T}, v{u}, v{u+1}", f"v_cvt_pk_bf16_f32 v{T+1}, v{u+2}, v{u+3}",
            f"v_lshlrev_b32 v{T+10}, 16, v{T}", f"v_and_b32 v{T+11}, s66, v{T}", f"v_lshlrev_b32 v{T+12}, 16, v{T+1}", f"v_and_b32 v{T+13}, s66, v{T+1}"]
        s3=[f"v_add_f32 v{T+6+k}, 1.0, v{T+6+k}" for k in range(4)]
        r=[f"v_rcp_f32 v{T+6+k}, v{T+6+k}" for k in range(4)]
        s4=[f"v_mul_f32 v{T+2+k}, v{T+2+k}, v{T+6+k}" for k in range(4)]+[f"v_cvt_pk_bf16_f32 v{T}, v{T+2}, v{T+3}", f"v_cvt_pk_bf16_f32 v{T+1}, v{T+4}, v{T+5}",
            f"v_lshlrev_b32 v{T+2}, 16, v{T}", f"v_and_b32 v{T+3}, s66, v{T}", f"v_lshlrev_b32 v{T+4}, 16, v{T+1}", f"v_and_b32 v{T+5}, s66, v{T+1}"]+[f"v_mul_f32 v{T+2+k}, v{T+2+k}, v{T+10+k}" for k in range(4)]+[
            f"v_cvt_pk_bf16_f32 v{T+14}, v{T+2}, v{T+3}", f"v_cvt_pk_bf16_f32 v{T+15}, v{T+4}, v{T+5}", f"ds_write_b64 v5, {R(T+14,2)} offset:{rt*ASLOT+32*j}"]
        return s1,e,s2,s3,r,s4
    def mix(tr,pl):
        out=[]; tr=list(tr); pl=list(pl); n=max(1,len(pl)//max(1,len(tr)))
        while tr or pl:
            if tr: out.append(tr.pop(0))
            for _ in range(n):
                if pl: out.append(pl.pop(0))
        return out
    tiles=[(rt,j) for rt in range(2) for j in range(7)]
    st=[tile(rt,j,16+16*(i%3)) for i,(rt,j) in enumerate(tiles)]
    N=len(tiles)
    for l in st[0][0]: a(l)
    for i in range(N+1):
        A=[];
        if i>0: A+=st[i-1][3]
        if i<N: A+=st[i][2]
        for l in mix(st[i][1] if i<N else [],A): a(l)
        B=[]
        if i>=2: B+=st[i-2][5]
        if i+1<N: B+=st[i+1][0]
        for l in mix(st[i-1][4] if i>0 else [],B): a(l)
        if i-2==6 or (i==N):
            if i==N:
                for l in st[N-1][5]: a(l)
            rt=0 if i-2==6 else 1
            a("s_waitcnt lgkmcnt(0)")
            for q in range(4):
                if q==3: a("s_mov_b32 exec_hi, 0")
                a(f"ds_read_b128 {R(112+4*q)}, v{108+q} offset:{rt*ASLOT}")
            a("s_mov_b32 exec_hi, -1")
            for q in range(4):
                a(f"s_waitcnt lgkmcnt({3-q})")
                if q==3: a("s_mov_b32 exec_hi, 0")
                a(f"buffer_store_dwordx4 {R(112+4*q)}, v{104+q}, {S4(HH)}, s{75+rt} offen{SC}"); vq.issue(("S",1))
            a("s_mov_b32 exec_hi, -1")
def conv_loads(a,vq):
    a(f"s_mul_i32 s3, s2, {2*XNT_STRIDE}"); a("v_lshlrev_b32 v5, 4, v0"); a("v_add_u32 v6, s3, v5"); a(f"s_movk_i32 s66, {XNT_STRIDE}")
    a("v_lshrrev_b32 v7, 1, v0"); a(f"v_mul_u32_u24 v7, {XNT_STRIDE}, v7"); a("v_and_b32 v9, 1, v0"); a("v_lshl_add_u32 v7, v9, 4, v7"); a("v_add_u32 v7, 4096, v7"); a("v_add_u32 v7, s3, v7")
    L=lab("CX"); a("v_cmp_gt_u32 vcc, 4, v0"); a("s_and_saveexec_b64 s[64:65], vcc"); a(f"s_cbranch_execz {L}")
    for q in range(5): a(f"buffer_load_dwordx4 a[{40+4*q}:{43+4*q}], v7, {S4(XNT)}, 0 offen offset:{4*q}{SC}")
    a(f"{L}:"); a("s_mov_b64 exec, s[64:65]")
    for dd in range(2):
        for q in range(5):
            a(f"buffer_load_dwordx4 a[{20*dd+4*q}:{20*dd+4*q+3}], v6, {S4(XNT)}, {'s66' if dd else '0'} offen offset:{4*q}{SC}"); vq.issue(("U",0))
def conv(a,vq,st_,hook_bar=None,hook_b3=None,hook_b1=None):
    a("v_lshlrev_b32 v5, 4, v0"); a("v_lshrrev_b32 v7, 1, v0"); a("v_and_b32 v9, 1, v0")
    a(f"v_mul_u32_u24 v10, {UB}, v7"); a("v_lshl_add_u32 v10, v9, 4, v10"); a("v_add_u32 v10, 4096, v10")
    vq.wait_for(a,lambda t:t==("U",0))
    for i in range(60): a(f"v_accvgpr_read_b32 v{16+i}, a{i}")
    def copies(base,vaddr):
        for s in range(8):
            q=s>>1
            if s&1:
                for k in range(4): a(f"v_alignbit_b32 v{104+4*q+k}, v{base+4*(q+1)+k}, v{base+4*q+k}, 16")
                src=104+4*q
            else: src=base+4*q
            a(f"ds_write_b128 v{vaddr}, {R(src)} offset:{s*CSTR+16*COFF[s]}")
    a(f"v_add_u32 v11, {UB}, v5")
    a("v_add_u32 v6, 1, v1"); a("v_and_b32 v7, 7, v6"); a(f"v_mul_u32_u24 v8, {CSTR}, v7")
    pk=sum(c<<(4*i) for i,c in enumerate(COFF)); a(f"s_mov_b32 s67, {pk}")
    a("v_lshlrev_b32 v9, 2, v7"); a("v_lshrrev_b32 v9, v9, s67"); a("v_and_b32 v9, 15, v9"); a("v_lshl_add_u32 v8, v9, 4, v8")
    a("v_and_b32 v6, 0x18, v6"); a("v_lshl_add_u32 v6, v2, 3, v6"); a("v_lshl_add_u32 v8, v6, 1, v8")
    a("v_lshrrev_b32 v12, 1, v3"); a("v_and_b32 v13, 1, v3")
    a(f"v_mul_u32_u24 v9, {UB}, v12"); a("v_lshl_add_u32 v9, v13, 8, v9"); a("v_add_u32 v208, v8, v9")
    a("v_lshlrev_b32 v6, 5, v1"); a("v_lshlrev_b32 v7, 4, v2"); a("v_sub_u32 v6, v7, v6"); a(f"v_add_u32 v6, {KRBASE+2*2032-64*56}, v6")
    a(f"v_mul_u32_u24 v9, {2*KRB}, v12"); a("v_lshl_add_u32 v9, v13, 8, v9"); a("v_add_u32 v209, v6, v9")
    for i in range(32): a(f"v_mov_b32 v{224+i}, 0")
    st_(a,"cv_copies")
    copies(16,5); copies(36,11)
    L=lab("CX"); a("v_cmp_gt_u32 vcc, 4, v0"); a("s_and_saveexec_b64 s[64:65], vcc"); a(f"s_cbranch_execz {L}")
    copies(56,10); a(f"{L}:"); a("s_mov_b64 exec, s[64:65]")
    a("s_waitcnt lgkmcnt(0)")
    if hook_bar: hook_bar()
    else: a("s_barrier")
    st_(a,"cv_main")
    acc=lambda C: R(224+4*C)
    RA=lambda st,i: R(16+96*st+4*i); RH=lambda st,i: R(48+96*st+4*i); RL=lambda st,i: R(80+96*st+4*i)
    def loads(st,b):
        out=[]
        for i in range(8):
            out.append(f"ds_read_b128 {RA(st,i)}, v208 offset:{512*i+64*b}")
            out.append(f"ds_read_b128 {RH(st,i)}, v209 offset:{64*(b-8*i+56)}")
            out.append(f"ds_read_b128 {RL(st,i)}, v209 offset:{64*(b-8*i+56)+KRB}")
        return out
    for l in loads(0,0): a(l)
    for b in range(4):
        st=b&1; nxt=loads(st^1,b+1) if b<3 else []
        if b==3 and hook_b3: hook_b3()
        if b==1 and hook_b1: hook_b1()
        a("s_waitcnt lgkmcnt(0)"); k=0
        for C in range(8):
            for ap in range(C+1):
                m=C-ap
                a(f"v_mfma_f32_16x16x32_bf16 {acc(C)}, {RA(st,ap)}, {RH(st,m)}, {acc(C)}")
                a(f"v_mfma_f32_16x16x32_bf16 {acc(C)}, {RA(st,ap)}, {RL(st,m)}, {acc(C)}")
                if nxt and k>=4: a(nxt.pop(0))
                k+=1
        while nxt: a(nxt.pop(0))
    st_(a,"cv_xchg")
    a("v_lshlrev_b32 v5, 4, v4"); a("v_lshl_add_u32 v6, v3, 12, v5"); a(f"v_add_u32 v6, {CXCH}, v6"); a("v_xor_b32 v7, 0x1000, v6")
    assert CXCH%8192==0
    Lo=lab("CO"); Lj=lab("CJ")
    a("s_and_b32 s64, s68, 1"); a("s_cmp_eq_u32 s64, 0"); a(f"s_cbranch_scc0 {Lo}")
    for i in range(4): a(f"ds_write_b128 v6, {acc(4+i)} offset:{1024*i}")
    a(f"s_branch {Lj}"); a(f"{Lo}:")
    for i in range(4): a(f"ds_write_b128 v6, {acc(i)} offset:{1024*i}")
    for i in range(16): a(f"v_mov_b32 v{224+i}, v{240+i}")
    a(f"{Lj}:"); a("s_waitcnt lgkmcnt(0)"); a("s_barrier")
    for i in range(4): a(f"ds_read_b128 {R(16+4*i)}, v7 offset:{1024*i}")
    a("v_lshlrev_b32 v8, 5, v1"); a("v_lshl_add_u32 v8, v2, 3, v8"); a("v_lshl_add_u32 v8, v3, 11, v8"); a(f"v_add_u32 v8, {CXCH+16384}, v8")
    a("v_lshl_add_u32 v9, v3, 11, v5"); a(f"v_add_u32 v9, {CXCH+16384}, v9")
    a("s_lshl_b32 s3, s2, 13"); a("v_lshl_add_u32 v10, v3, 11, v5"); a("v_add_u32 v10, s3, v10")
    a("s_waitcnt lgkmcnt(0)")
    for i in range(4):
        for k in range(4): a(f"v_add_f32 v{16+4*i+k}, v{16+4*i+k}, v{224+4*i+k}")
        a(f"v_cvt_pk_bf16_f32 v{32+2*i}, v{16+4*i}, v{17+4*i}"); a(f"v_cvt_pk_bf16_f32 v{33+2*i}, v{18+4*i}, v{19+4*i}")
        a(f"ds_write_b64 v8, {R(32+2*i,2)} offset:{512*i}")
    a("s_waitcnt lgkmcnt(0)")
    a("ds_read_b128 v[40:43], v9"); a("ds_read_b128 v[44:47], v9 offset:1024"); a("s_waitcnt lgkmcnt(0)")
    a(f"buffer_store_dwordx4 v[40:43], v10, {S4(YT)}, 0 offen{SC}"); vq.issue(("S",2))
    a(f"buffer_store_dwordx4 v[44:47], v10, {S4(YT)}, 0 offen offset:1024{SC}"); vq.issue(("S",2))
def g2_setup(a):
    a("s_and_b32 s64, s2, 7"); a("s_lshr_b32 s65, s2, 3"); a("s_lshl_b32 s70, s64, 2"); a("s_lshr_b32 s66, s65, 3"); a("s_add_u32 s70, s70, s66"); a("s_and_b32 s71, s65, 7")
    a("v_lshrrev_b32 v5, 3, v4"); a("v_and_b32 v6, 7, v4")
    a("s_lshl_b32 s72, s70, 6"); a("v_add_u32 v7, s72, v5"); a("v_mul_u32_u24 v7, 3584, v7"); a("s_mul_i32 s66, s68, 896"); a("v_add_u32 v7, s66, v7")
    a("v_xor_b32 v8, v6, v2"); a("v_lshl_add_u32 v10, v8, 4, v7"); a("v_xor_b32 v8, 4, v8"); a("v_lshl_add_u32 v11, v8, 4, v7")
    a("s_mul_i32 s66, s68, 448"); a("v_add_u32 v7, s66, v5"); a("v_lshlrev_b32 v7, 10, v7"); a("s_lshl_b32 s73, s71, 7"); a("v_add_u32 v7, s73, v7")
    a("v_and_b32 v8, 1, v2"); a("v_lshlrev_b32 v8, 1, v8"); a("v_xor_b32 v8, v6, v8"); a("v_lshl_add_u32 v12, v8, 4, v7"); a("v_xor_b32 v8, 4, v8"); a("v_lshl_add_u32 v13, v8, 4, v7")
    a("s_lshl_b32 s74, s68, 4"); a("s_add_u32 s66, s72, s74"); a("v_add_u32 v7, s66, v5"); a("v_lshlrev_b32 v7, 10, v7"); a("v_lshl_add_u32 v7, v6, 4, v7"); a("v_add_u32 v14, s73, v7")
    a("s_lshl_b32 s66, s71, 6"); a("s_add_u32 s66, s66, s74"); a("v_add_u32 v7, s66, v5"); a("v_lshlrev_b32 v7, 12, v7"); a("v_lshl_add_u32 v7, v6, 4, v7"); a("s_lshl_b32 s66, s72, 1"); a("v_add_u32 v15, s66, v7")
    a(f"s_mul_i32 s75, s68, {WB}")
    a("v_lshrrev_b32 v7, 1, v1"); a("v_xor_b32 v8, v2, v7"); a("v_lshlrev_b32 v9, 7, v1"); a("v_add_u32 v9, s75, v9"); a("v_lshl_add_u32 v16, v8, 4, v9"); a("v_xor_b32 v8, 4, v8"); a("v_lshl_add_u32 v17, v8, 4, v9")
    a("v_lshrrev_b32 v7, 2, v1"); a("v_lshl_add_u32 v8, v2, 3, v7"); a("v_lshlrev_b32 v8, 7, v8"); a("v_and_b32 v9, 1, v0"); a("v_lshl_add_u32 v8, v9, 3, v8"); a("v_add_u32 v8, s75, v8")
    a("v_bfe_u32 v9, v1, 3, 1"); a("v_lshlrev_b32 v9, 1, v9"); a("v_and_b32 v7, 1, v2"); a("v_lshl_add_u32 v9, v7, 2, v9"); a("v_bfe_u32 v7, v0, 1, 1"); a("v_xor_b32 v9, v9, v7")
    for j in range(4): a(f"v_xor_b32 v7, {2*j}, v9"); a(f"v_lshl_add_u32 v{18+j}, v7, 4, v8")
    a("s_lshl_b32 s76, s68, 11"); a(f"s_add_u32 s76, s76, {EP}")
def g2(a,vq,st_,hook0=None):
    def dma(c):
        for q in range(8):
            a(f"s_mov_b32 s66, {q*28672+c*128}"); a(f"s_add_u32 m0, s75, {(c&1)*16384+q*1024}")
            a(f"buffer_load_dwordx4 v{10+(q&1)}, {S4(HH)}, s66 offen{SC} lds"); vq.issue(("C",c))
            a(f"s_mov_b32 s66, {(c*64+8*q)*1024}"); a(f"s_add_u32 m0, s75, {(c&1)*16384+8192+q*1024}")
            a(f"buffer_load_dwordx4 v{12+(q&1)}, {S4(WD)}, s66 offen lds"); vq.issue(("C",c))
    def etile(ti,sr,vo,st,sc):
        for q in range(2):
            a(f"s_mov_b32 s66, {q*st}"); a(f"s_add_u32 m0, s76, {ti*8192+q*1024}")
            a(f"buffer_load_dwordx4 v{vo}, {S4(sr)}, s66 offen{sc} lds"); vq.issue(("E",0))
    dma(0); dma(1)
    if hook0: hook0()
    etile(0,X,14,8192,""); etile(1,XN,14,8192,SC)
    if not MEGA: etile(2,YT,15,32768,"")
    a("v_lshlrev_b32 v7, 3, v2"); a("v_add_u32 v7, s73, v7")
    for j in range(4):
        a(f"buffer_load_dwordx2 {R(24+2*j,2)}, v7, {S4(DSK)}, 0 offen offset:{32*j}"); vq.issue(("E",0))
    ACC=lambda j,t: 64+16*j+4*t; HF=lambda ks,t: 128+16*ks+4*t; WF=lambda ks,j: 160+16*ks+4*j
    for i in range(64): a(f"v_mov_b32 v{64+i}, 0")
    for c in range(7):
        vq.wait_for(a,lambda t:t==("C",c))
        if c==0: st_(a,"g2_loop")
        if c==5 and MEGA:
            a("s_and_b32 s64, s2, 7"); a("s_lshl_b32 s64, s64, 10"); a("s_lshl_b32 s65, s71, 7"); a("s_add_u32 s64, s64, s65"); a(f"s_add_u32 s64, s64, {2*8192}")
            a("v_and_b32 v22, 31, v4"); a("v_lshlrev_b32 v22, 2, v22"); a("v_add_u32 v22, s64, v22"); poll_issue(a,vq,22,23,("PY",0))
        bo=(c&1)*16384
        for ks in range(2):
            for t in range(4):
                a(f"ds_read_b128 {R(HF(ks,t))}, v{16+ks} offset:{bo+t*2048}")
                for h in range(2): a(f"ds_read_b64_tr_b16 {R(WF(ks,t)+2*h,2)}, v{18+t} offset:{bo+8192+ks*4096+h*512}")
        a("s_waitcnt lgkmcnt(0)")
        if c+2<7: dma(c+2)
        for ks in range(2):
            for j in range(4):
                for t in range(4):
                    d=ACC(j,t); a(f"v_mfma_f32_16x16x32_bf16 {R(d)}, {R(WF(ks,j))}, {R(HF(ks,t))}, {R(d)}")
    st_(a,"g2_epi")
    a("v_lshlrev_b32 v7, 4, v4"); a("v_add_u32 v8, s75, v7")
    for t in range(4):
        for j in range(4): a(f"ds_write_b128 v8, {R(ACC(j,t))} offset:{(t*4+j)*1024}")
    if MEGA:
        poll_check(a,vq,22,23,("PY",0))
        etile(2,YT,15,32768,SC)
    a("s_waitcnt lgkmcnt(0)"); vq.drain(a); a("s_barrier")
    a("s_lshl_b32 s66, s68, 12"); a("v_add_u32 v8, s66, v7"); a(f"v_add_u32 v9, {2*WB}, v8")
    for ww in range(4):
        for j in range(4): a(f"ds_read_b128 {R(64+16*ww+4*j)}, v{8+(ww>>1)} offset:{(ww&1)*WB+j*1024}")
    a("v_lshlrev_b32 v5, 7, v1"); a("v_lshl_add_u32 v5, v2, 3, v5"); a("v_add_u32 v5, s76, v5")
    for j in range(4):
        a(f"ds_read_b64 {R(128+2*j,2)}, v5 offset:{32*j}"); a(f"ds_read_b64 {R(136+2*j,2)}, v5 offset:{8192+32*j}")
    a("v_lshrrev_b32 v6, 2, v1"); a("v_lshl_add_u32 v6, v2, 2, v6"); a("v_lshlrev_b32 v6, 7, v6"); a("v_and_b32 v7, 3, v0"); a("v_lshl_add_u32 v6, v7, 3, v6")
    a("s_lshl_b32 s66, s68, 5"); a(f"s_add_u32 s66, s66, {EP+16384}"); a("v_add_u32 v6, s66, v6")
    for j in range(4): a(f"ds_read_b64_tr_b16 {R(144+2*j,2)}, v6 offset:{2048*j}")
    a("s_mov_b32 s67, 0xffff0000"); a("s_waitcnt lgkmcnt(0)")
    for j in range(4):
        for i in range(4):
            b=64+4*j+i; a(f"v_add_f32 v{b}, v{b}, v{b+16}"); a(f"v_add_f32 v{b+32}, v{b+32}, v{b+48}"); a(f"v_add_f32 v{b}, v{b}, v{b+32}")
        for p in range(2):
            b=64+4*j+2*p; Xr=128+2*j+p; XNr=136+2*j+p; Y=144+2*j+p; D=24+2*j+p
            a(f"v_cvt_pk_bf16_f32 v160, v{b}, v{b+1}")
            a(f"v_lshlrev_b32 v161, 16, v{XNr}"); a(f"v_and_b32 v162, s67, v{XNr}"); a(f"v_lshlrev_b32 v163, 16, v{D}"); a(f"v_and_b32 v164, s67, v{D}")
            a("v_mul_f32 v161, v161, v163"); a("v_mul_f32 v162, v162, v164"); a("v_cvt_pk_bf16_f32 v161, v161, v162")
            for src in (Y,Xr):
                a("v_lshlrev_b32 v162, 16, v161"); a("v_and_b32 v161, s67, v161"); a(f"v_lshlrev_b32 v163, 16, v{src}"); a(f"v_and_b32 v164, s67, v{src}")
                a("v_add_f32 v162, v163, v162"); a("v_add_f32 v161, v164, v161"); a("v_cvt_pk_bf16_f32 v161, v162, v161")
            a("v_lshlrev_b32 v162, 16, v161"); a("v_and_b32 v161, s67, v161"); a("v_lshlrev_b32 v163, 16, v160"); a("v_and_b32 v164, s67, v160")
            a("v_add_f32 v162, v162, v163"); a("v_add_f32 v161, v161, v164"); a(f"v_cvt_pk_bf16_f32 v{152+2*j+p}, v162, v161")
        a(f"ds_write_b64 v5, {R(152+2*j,2)} offset:{32*j}")
    a("v_lshlrev_b32 v7, 4, v4"); a("v_add_u32 v7, s76, v7"); a("s_waitcnt lgkmcnt(0)")
    a("ds_read_b128 v[64:67], v7"); a("ds_read_b128 v[68:71], v7 offset:1024"); a("s_movk_i32 s66, 0x2000"); a("s_waitcnt lgkmcnt(0)")
    a(f"buffer_store_dwordx4 v[64:67], v14, {S4(OUT)}, 0 offen"); a(f"buffer_store_dwordx4 v[68:71], v14, {S4(OUT)}, s66 offen")

def head(a,name):
    a(f"{name}:"); a("s_cmp_ge_u32 s2, 256"); a(f"s_cbranch_scc1 {name}_END")
def tail(a,name): a(f"{name}_END:"); a("s_endpgm")
META=lambda n: dict(name=n, grid=256, block=256, lds=163840, vgpr=320, accum=256, sgpr=102)
def build():
    ks=[]
    a=Asm(); vq=VmQ(); st=St(); n="mega_kernel"; head(a,n); st(a,"start")
    setup(a); token_publish(a); p0_loads(a,vq); p1_loads(a,vq); g1_setup(a)
    warm_w(a,vq); g1_bdma(a,vq,0); g1_bdma(a,vq,1); p1_setup(a)
    p0_compute(a,vq); st(a,"p1_start")
    g1_setup2(a)
    def h_sig(): st(a,"sig0"); token_get(a,vq); signal(a,vq,0,("S",0)); st(a,"sig0e")
    def h_pi(): st(a,"pi0"); a("s_and_b32 s64, s2, 7"); a("s_lshl_b32 s64, s64, 10"); a("v_lshlrev_b32 v16, 4, v4"); a("v_add_u32 v16, s64, v16"); poll_issue(a,vq,16,20,("PX",0),4)
    def h_pc():
        st(a,"pc0"); poll_check(a,vq,16,20,("PX",0),4); st(a,"pc0e")
        g1_adma(a,vq,0); g1_adma(a,vq,1); g1_adma(a,vq,2)
    def h2(): h_sig(); g1_bdma(a,vq,2)
    def h2(): token_issue(a,vq); g1_bdma(a,vq,2); warm_wd(a,vq,5)
    hooks={2:h2, 6:h_sig, 8:lambda:g1_bdma(a,vq,3), 10:h_pi, 12:h_pc, 99:lambda:g1_bdma(a,vq,4)}
    if os.environ.get("EXP")=="1":
        def h99(): h_pc(); g1_bdma(a,vq,2); g1_bdma(a,vq,3); g1_bdma(a,vq,4)
        hooks={2:h_sig, 4:lambda:st(a,"i4"), 6:lambda:st(a,"i6"), 8:lambda:st(a,"i8"),10:lambda:st(a,"i10"), 14:h_pi, 99:h99}
    p1(a,vq,hooks); st(a,"p1_end")
    g1_main(a,vq,st,{15:lambda:conv_loads(a,vq)}); st(a,"g1_epi"); g1_epilogue(a,vq); a("s_barrier"); st(a,"cv_start")
    def h_sigH(): signal(a,vq,1,("S",1))
    def h_piH():
        a("s_and_b32 s64, s2, 7"); a("s_lshl_b32 s64, s64, 1"); a("s_lshr_b32 s65, s2, 7"); a("s_add_u32 s64, s64, s65")
        a("s_and_b32 s65, s64, 7"); a("s_lshl_b32 s65, s65, 3"); a("s_lshr_b32 s64, s64, 3"); a("s_add_u32 s64, s64, s65"); a("s_lshl_b32 s64, s64, 2")
        a("s_and_b32 s65, s2, 7"); a("s_lshl_b32 s65, s65, 10"); a("s_add_u32 s64, s64, s65"); a(f"s_add_u32 s64, s64, {8192}")
        a("v_bfe_u32 v212, v4, 2, 2"); a("v_lshlrev_b32 v212, 8, v212"); a("v_and_b32 v210, 3, v4"); a("v_lshl_add_u32 v210, v210, 3, v212"); a("v_add_u32 v210, s64, v210")
        poll_issue(a,vq,210,211,("PH",0))
    conv(a,vq,st,None,h_piH,h_sigH)
    a("s_barrier")
    poll_check(a,vq,210,211,("PH",0))
    g2_setup(a); st(a,"g2_start")
    def h_sigY(): signal(a,vq,2,("S",2))
    g2(a,vq,st,h_sigY); st(a,"end"); st.dump(a,0); tail(a,n); ks.append((a.render(),META(n)))
    return ks
if __name__=="__main__":
    from gen import build as wr
    wr(build(), sys.argv[1])
```

```python
import os, sys
from asmlib import Asm
STAMPS=bool(int(os.environ.get("STAMPS","0"))); SKIP=int(os.environ.get("SKIP","0"))
SC=" sc1"
WS_XN=0; WS_XNT=2<<20; WS_YT=9<<20; WS_H=16<<20; WS_FL=12<<20
XNT_STRIDE=4160; XNT_SIZE=512*4160
X,XN,XNT,HH,YT,WG,WU,WD,OUT,DSK,DBG,FL=8,12,16,20,24,28,32,36,40,44,48,4
GSTR=960; MATB=8*GSTR; STG=2*MATB; NSTB=5
BRING=0; ARING=NSTB*STG; ASLOT=16384; NSTA=3
KRB=4608; KRBASE=163840-4*KRB
KTAB=ARING+2*ASLOT; LNT=KTAB
COFF=[0,1,4,5,8,8,11,12]; CSTR=4352; UB=8*CSTR
CXCH=73728
WB=16384; EP=8*WB
class VmQ:
    def __init__(s): s.q=[]; s.tot=0; s.marks={}
    def issue(s,tag): s.q.append(tag); s.tot+=1
    def mark(s,tag): s.marks[tag]=s.tot
    def since(s,tag): return min(63,s.tot-s.marks[tag])
    def wait_for(s,a,pred):
        idx=[i for i,t in enumerate(s.q) if pred(t)]
        if not idx: return
        n=min(63,len(s.q)-1-max(idx))
        a(f"s_waitcnt vmcnt({n})"); s.q=s.q[len(s.q)-n:] if n>0 else []
    def drain(s,a): a("s_waitcnt vmcnt(0)"); s.q=[]
    def copy(s):
        c=VmQ(); c.q=list(s.q); c.tot=s.tot; c.marks=dict(s.marks); return c
class St:
    def __init__(s): s.n=0; s.k=0; s.names=[]
    def __call__(s,a,name="",dup=False):
        if dup:
            if name in s.names: i=s.names.index(name); a(f"{os.environ.get('TIMER','s_memtime')} s[{84+2*i}:{85+2*i}]")
            return
        s.k+=1
        if STAMPS and s.k>SKIP and s.n<9:
            a(f"{os.environ.get('TIMER','s_memtime')} s[{84+2*s.n}:{85+2*s.n}]"); s.n+=1; s.names.append(name)
    def dump(s,a):
        if not STAMPS: return
        a("s_load_dwordx2 s[4:5], s[0:1], 104"); a("s_waitcnt lgkmcnt(0) vmcnt(0)")
        srd(a,52,4,5,1<<20,add=(48<<20))
        a("v_lshrrev_b32 v1, 6, v0"); a("s_lshl_b32 s3, s2, 9"); a("v_lshlrev_b32 v1, 6, v1"); a("v_add_u32 v1, s3, v1")
        for i in range(s.n): a(f"v_mov_b32 v2, s{84+2*i}"); a(f"buffer_store_dword v2, v1, s[52:55], 0 offen offset:{4*i}")
        print("stamps:",s.names)
def srd(a,d,lo,hi,size,add=None):
    if add: a(f"s_add_u32 s{d}, s{lo}, {add}"); a(f"s_addc_u32 s{d+1}, s{hi}, 0")
    else: a(f"s_mov_b32 s{d}, s{lo}"); a(f"s_mov_b32 s{d+1}, s{hi}")
    a(f"s_and_b32 s{d+1}, s{d+1}, 0xffff"); a(f"s_mov_b32 s{d+2}, {size}"); a(f"s_mov_b32 s{d+3}, 0x00020000")
R=lambda b,n=4: f"v[{b}:{b+n-1}]"
S4=lambda b: f"s[{b}:{b+3}]"
_lab=[0]
def lab(p): _lab[0]+=1; return f"{p}_{_lab[0]}"
def masked(a,cond,body):
    L=lab("MK"); a(cond); a("s_and_saveexec_b64 s[64:65], vcc"); a(f"s_cbranch_execz {L}"); body(); a(f"{L}:"); a("s_mov_b64 exec, s[64:65]")
def setup(a):
    a("s_load_dwordx16 s[68:83], s[0:1], 0"); a("s_load_dwordx8 s[52:59], s[0:1], 64"); a("s_load_dwordx4 s[60:63], s[0:1], 96")
    a("v_and_b32 v1, 15, v0"); a("v_bfe_u32 v2, v0, 4, 2"); a("v_lshrrev_b32 v3, 6, v0"); a("v_and_b32 v4, 63, v0")
    a("s_waitcnt lgkmcnt(0)")
    srd(a,X,68,69,2<<20); srd(a,XN,62,63,2<<20); srd(a,XNT,62,63,XNT_SIZE,add=WS_XNT); srd(a,HH,62,63,2048*3584,add=WS_H)
    srd(a,YT,62,63,2<<20,add=WS_YT); srd(a,WG,52,53,512*3584); srd(a,WU,54,55,512*3584); srd(a,WD,56,57,1792*1024)
    srd(a,OUT,58,59,2<<20); srd(a,DSK,80,81,1024); srd(a,DBG,60,61,256); srd(a,FL,62,63,32768,add=WS_FL)
    a("v_readfirstlane_b32 s68, v3"); a("s_and_b32 s69, s68, 3"); a("s_lshr_b32 s80, s68, 2")
def token_publish(a):
    L=lab("TK")
    a("s_cmp_lg_u32 s2, 0"); a(f"s_cbranch_scc1 {L}"); a("s_cmp_lg_u32 s68, 0"); a(f"s_cbranch_scc1 {L}")
    a("s_memrealtime s[64:65]"); a("s_waitcnt lgkmcnt(0)"); a("s_or_b32 s64, s64, 1")
    a("v_mov_b32 v5, s64"); a("v_mov_b32 v6, 0"); a("s_mov_b64 exec, 1")
    a(f"buffer_store_dword v5, v6, {S4(DBG)}, 0 offen sc1"); a("s_mov_b64 exec, -1"); a(f"{L}:")
def token_issue(a,vq):
    L=lab("TI"); a("v_mov_b32 v122, 0"); a("s_cmp_lg_u32 s68, 0"); a(f"s_cbranch_scc1 {L}")
    a(f"buffer_load_dword v123, v122, {S4(DBG)}, 0 offen sc1"); a(f"{L}:"); vq.mark(("TK",0))
def token_get(a,vq):
    L=lab("TG"); E=lab("TGE")
    a("s_cmp_lg_u32 s68, 0"); a(f"s_cbranch_scc1 {E}")
    a(f"s_waitcnt vmcnt({vq.since(('TK',0))})"); a("s_mov_b32 s66, 0")
    a(f"{L}:"); a("v_readfirstlane_b32 s83, v123"); a("s_add_u32 s66, s66, 1")
    a("s_cmp_lg_u32 s83, 0"); a(f"s_cbranch_scc1 {E}"); a("s_cmp_gt_u32 s66, 0x40000"); a(f"s_cbranch_scc1 {E}")
    a("s_sleep 8"); a(f"buffer_load_dword v123, v122, {S4(DBG)}, 0 offen sc1"); a("s_waitcnt vmcnt(0)"); a(f"s_branch {L}"); a(f"{E}:")
def signal(a,vq,phase,tag,t=5,lowonly=False):
    if lowonly:
        L=lab("SL"); a("s_cmp_lg_u32 s80, 0"); a(f"s_cbranch_scc1 {L}"); vq.wait_for(a,lambda x:x==tag); a(f"{L}:")
    else: vq.wait_for(a,lambda x:x==tag)
    a("s_barrier")
    a(f"v_mov_b32 v{t}, s83"); a("s_lshl_b32 s64, s2, 2"); a(f"s_add_u32 s64, s64, {phase*8192}"); a(f"v_lshlrev_b32 v{t+1}, 10, v0"); a(f"v_add_u32 v{t+1}, s64, v{t+1}")
    masked(a,"v_cmp_gt_u32 vcc, 8, v0",lambda: a(f"buffer_store_dword v{t}, v{t+1}, {S4(FL)}, 0 offen sc1"))
def poll_issue(a,vq,voff,vdst,tag,nd=1):
    L=lab("PI"); a("s_cmp_lg_u32 s68, 0"); a(f"s_cbranch_scc1 {L}")
    a(f"buffer_load_dword{'x4' if nd==4 else ''} {R(vdst,4) if nd==4 else 'v%d'%vdst}, v{voff}, {S4(FL)}, 0 offen sc1"); a(f"{L}:"); vq.mark(tag)
def poll_check(a,vq,voff,vdst,tag,nd=1,barrier=True):
    L=lab("POLL"); E=lab("POLLE")
    a("s_cmp_lg_u32 s68, 0"); a(f"s_cbranch_scc1 {E}"); a(f"s_waitcnt vmcnt({vq.since(tag)})"); a("s_mov_b32 s66, 0"); a(f"{L}:")
    if nd==4:
        for k in range(4): a(f"v_xor_b32 v{vdst+k}, s83, v{vdst+k}")
        a(f"v_or3_b32 v{vdst}, v{vdst}, v{vdst+1}, v{vdst+2}"); a(f"v_or_b32 v{vdst}, v{vdst}, v{vdst+3}"); a(f"v_cmp_ne_u32 vcc, 0, v{vdst}")
    else: a(f"v_cmp_ne_u32 vcc, s83, v{vdst}")
    a("s_add_u32 s66, s66, 1"); a("s_nop 1"); a("s_cmp_eq_u64 vcc, 0"); a(f"s_cbranch_scc1 {E}"); a("s_cmp_gt_u32 s66, 0x40000"); a(f"s_cbranch_scc1 {E}")
    a("s_sleep 12"); a(f"buffer_load_dword{'x4' if nd==4 else ''} {R(vdst,4) if nd==4 else 'v%d'%vdst}, v{voff}, {S4(FL)}, 0 offen sc1"); a("s_waitcnt vmcnt(0)"); a(f"s_branch {L}")
    a(f"{E}:")
    if barrier: a("s_barrier")
def p0_addr(a):
    a("s_lshl_b32 s3, s2, 13"); a("v_lshlrev_b32 v110, 11, v3"); a("v_lshl_add_u32 v110, v4, 4, v110"); a("v_add_u32 v111, s3, v110"); a(f"v_add_u32 v110, {LNT}, v110")
def p0_loads(a,vq):
    for r in range(2): a(f"buffer_load_dwordx4 {R(16+4*r)}, v111, {S4(X)}, 0 offen offset:{1024*r}"); vq.issue(("X",r))
def p0_compute(a,vq):
    NR=2; F=lambda r,i: 130+8*r+i; S=lambda r: 64+r; M=lambda r: 84+r; Tm=lambda r,i: 146+8*r+i; Q=lambda r,i: 162+8*r+i
    a("s_mov_b32 s81, 0xffff0000"); a("v_mov_b32 v80, 0x3b000000")
    for r in range(NR):
        vq.wait_for(a,lambda t:t==("X",r))
        for i in range(4): a(f"v_lshlrev_b32 v{F(r,2*i)}, 16, v{16+4*r+i}"); a(f"v_and_b32 v{F(r,2*i+1)}, s81, v{16+4*r+i}")
        a(f"v_add_f32 v{S(r)}, v{F(r,0)}, v{F(r,1)}"); a(f"v_add_f32 v70, v{F(r,2)}, v{F(r,3)}"); a(f"v_add_f32 v71, v{F(r,4)}, v{F(r,5)}"); a(f"v_add_f32 v72, v{F(r,6)}, v{F(r,7)}")
        a(f"v_add_f32 v{S(r)}, v{S(r)}, v70"); a("v_add_f32 v71, v71, v72"); a(f"v_add_f32 v{S(r)}, v{S(r)}, v71")
    def red():
        for m in ("row_shr:1 row_mask:0xf bank_mask:0xf","row_shr:2 row_mask:0xf bank_mask:0xf","row_shr:4 row_mask:0xf bank_mask:0xf","row_shr:8 row_mask:0xf bank_mask:0xf","row_bcast:15 row_mask:0xa bank_mask:0xf","row_bcast:31 row_mask:0xc bank_mask:0xf"):
            for r in range(NR): a(f"v_add_f32_dpp v{S(r)}, v{S(r)}, v{S(r)} {m}")
    red()
    for r in range(NR): a(f"v_readlane_b32 s{64+r}, v{S(r)}, 63")
    for r in range(NR): a(f"v_mul_f32 v{M(r)}, s{64+r}, v80")
    for r in range(NR):
        for i in range(8): a(f"v_sub_f32 v{Tm(r,i)}, v{F(r,i)}, v{M(r)}")
    for i in range(8):
        for r in range(NR): a(f"v_mul_f32 v{S(r)}, v{Tm(r,i)}, v{Tm(r,i)}" if i==0 else f"v_fmac_f32 v{S(r)}, v{Tm(r,i)}, v{Tm(r,i)}")
    red()
    for r in range(NR): a(f"v_readlane_b32 s{64+r}, v{S(r)}, 63")
    a("s_mov_b32 s66, 0x3727c5ac")
    seq=lambda r:[f"v_mul_f32 v{70+r}, s{64+r}, v80", f"v_cvt_pk_bf16_f32 v{72+r}, v{M(r)}, v{70+r}", f"v_lshlrev_b32 v{M(r)}, 16, v{72+r}", f"v_and_b32 v{70+r}, s81, v{72+r}", f"v_add_f32 v{70+r}, s66, v{70+r}",
        f"v_cvt_pk_bf16_f32 v{70+r}, v{70+r}, v{70+r}", f"v_and_b32 v{70+r}, s81, v{70+r}", f"v_sqrt_f32 v{70+r}, v{70+r}", f"v_cvt_pk_bf16_f32 v{70+r}, v{70+r}, v{70+r}", f"v_and_b32 v{88+r}, s81, v{70+r}", f"v_rcp_f32 v{92+r}, v{88+r}"]
    for x,y in zip(seq(0),seq(1)): a(x); a(y)
    for r in range(NR):
        for i in range(8): a(f"v_sub_f32 v{Tm(r,i)}, v{F(r,i)}, v{M(r)}")
        for i in range(4): a(f"v_cvt_pk_bf16_f32 v{74+i}, v{Tm(r,2*i)}, v{Tm(r,2*i+1)}")
        for i in range(4): a(f"v_lshlrev_b32 v{Tm(r,2*i)}, 16, v{74+i}"); a(f"v_and_b32 v{Tm(r,2*i+1)}, s81, v{74+i}")
        for i in range(8): a(f"v_mul_f32 v{Q(r,i)}, v{Tm(r,i)}, v{92+r}")
        for i in range(8): a(f"v_fma_f32 v{Tm(r,i)}, -v{Q(r,i)}, v{88+r}, v{Tm(r,i)}")
        for i in range(8): a(f"v_fmac_f32 v{Q(r,i)}, v{Tm(r,i)}, v{92+r}")
        for i in range(4): a(f"v_cvt_pk_bf16_f32 v{16+4*r+i}, v{Q(r,2*i)}, v{Q(r,2*i+1)}")
        a(f"buffer_store_dwordx4 {R(16+4*r)}, v111, {S4(XN)}, 0 offen offset:{1024*r}{SC}"); vq.issue(("S",0))
        a(f"ds_write_b128 v110, {R(16+4*r)} offset:{1024*r}")
    a("s_waitcnt lgkmcnt(0)"); a("s_barrier")
    a("v_lshlrev_b32 v7, 2, v0"); a(f"v_add_u32 v7, {LNT}, v7")
    for r in range(8): a(f"ds_read_b32 v{180+r}, v7 offset:{1024*r}")
    a("s_mov_b32 s64, 0x05040100"); a("s_mov_b32 s65, 0x07060302")
    a(f"v_mul_u32_u24 v8, {2*XNT_STRIDE}, v0"); a("s_lshl_b32 s3, s2, 4"); a("s_add_u32 s3, s3, 32"); a("v_add_u32 v8, s3, v8"); a(f"s_movk_i32 s66, {XNT_STRIDE}")
    a("s_waitcnt lgkmcnt(0)")
    for k in range(4): a(f"v_perm_b32 v{190+k}, v{181+2*k}, v{180+2*k}, s64"); a(f"v_perm_b32 v{194+k}, v{181+2*k}, v{180+2*k}, s65")
    a(f"buffer_store_dwordx4 v[190:193], v8, {S4(XNT)}, 0 offen{SC}"); vq.issue(("S",9))
    a(f"buffer_store_dwordx4 v[194:197], v8, {S4(XNT)}, s66 offen{SC}"); vq.issue(("S",9))
    a(f"s_mul_i32 s3, s2, {2*XNT_STRIDE}")
    a("v_and_b32 v7, 1, v0"); a("v_lshlrev_b32 v7, 4, v7"); a("v_bfe_u32 v9, v0, 1, 1"); a("v_mul_u32_u24 v9, 4128, v9"); a("v_add_u32 v7, v7, v9")
    a("v_bfe_u32 v9, v0, 2, 1"); a(f"v_mul_u32_u24 v9, {XNT_STRIDE}, v9"); a("v_add3_u32 v7, v7, v9, s3")
    for i in range(4): a(f"v_mov_b32 v{198+i}, 0")
    masked(a,"v_cmp_gt_u32 vcc, 8, v0",lambda: a(f"buffer_store_dwordx4 v[198:201], v7, {S4(XNT)}, 0 offen{SC}"))
def p0_prefetch(a):
    a("s_mul_i32 s64, s69, 28672"); a(f"s_mul_i32 s65, s69, {2*GSTR}")
    a("s_mov_b32 exec_hi, 0x00ffffff")
    for s_ in range(NSTB):
        for mat in range(2):
            for gi in range(2):
                a(f"s_add_u32 s66, s64, {s_*114688+gi*14336}"); a(f"s_add_u32 m0, s65, {BRING+s_*STG+mat*MATB+gi*GSTR}")
                a(f"buffer_load_dwordx4 v10, {S4((WG,WU)[mat])}, s66 offen lds")
        if s_==1:
            a("s_mov_b32 exec_hi, -1")
            a("v_subrev_u32 v119, 256, v0"); a("v_mul_u32_u24 v120, 0x5556, v119"); a("v_lshrrev_b32 v120, 16, v120"); a("v_mul_u32_u24 v121, 3, v120"); a("v_sub_u32 v121, v119, v121")
            a("s_and_b32 s66, s70, 7"); a("s_mul_i32 s66, s66, 44"); a("s_add_u32 s66, s66, 160")
            a("v_add_u32 v120, s66, v120"); a("v_mul_u32_u24 v120, 3584, v120"); a("v_mul_u32_u24 v121, 110, v121"); a("v_and_b32 v121, 0xfffffffc, v121")
            a("s_mul_i32 s66, s71, 224"); a("v_add3_u32 v120, v120, v121, s66")
            L=lab("WW"); a("v_cmp_gt_u32 vcc, 132, v119"); a("s_and_saveexec_b64 s[52:53], vcc"); a(f"s_cbranch_execz {L}")
            a(f"buffer_load_dword v124, v120, {S4(WG)}, 0 offen"); a(f"buffer_load_dword v125, v120, {S4(WU)}, 0 offen")
            a(f"{L}:"); a("s_mov_b64 exec, s[52:53]"); a("s_barrier"); a("s_mov_b32 exec_hi, 0x00ffffff")
    a("s_mov_b32 exec_hi, -1")
    a("s_lshr_b32 s64, s2, 6"); a("s_mul_i32 s64, s64, 448"); a("s_lshl_b32 s64, s64, 10")
    a("s_lshr_b32 s65, s2, 3"); a("s_and_b32 s65, s65, 7"); a("s_lshl_b32 s65, s65, 7"); a("s_add_u32 s64, s64, s65")
    a("v_lshlrev_b32 v121, 10, v119"); a("v_add_u32 v121, s64, v121"); a("s_mov_b32 s66, 0x40000")
    a(f"buffer_load_dword v126, v121, {S4(WD)}, 0 offen")
    L=lab("WD"); a("v_cmp_gt_u32 vcc, 192, v119"); a("s_and_saveexec_b64 s[52:53], vcc"); a(f"s_cbranch_execz {L}")
    a(f"buffer_load_dword v127, v121, {S4(WD)}, s66 offen"); a(f"{L}:"); a("s_mov_b64 exec, s[52:53]")
def p1_loads(a,vq):
    srd(a,52,70,71,131072); srd(a,56,72,73,131072); srd(a,60,74,75,131072); srd(a,64,76,77,131072)
    a("v_lshrrev_b32 v7, 4, v0"); a("v_lshlrev_b32 v7, 4, v7"); a("s_lshl_b32 s3, s2, 9"); a("v_add_u32 v7, s3, v7")
    for k in range(4): a(f"buffer_load_dwordx4 {R(224+4*k)}, v7, {S4(52+4*k)}, 0 offen"); vq.issue(("P",0))
    a("s_lshl_b32 s3, s2, 2"); a("s_load_dword s82, s[78:79], s3")
GI=100
def p1_setup(a):
    a("v_lshlrev_b32 v5, 3, v1"); a("v_cvt_f32_u32 v24, v5")
    a("v_and_b32 v5, 7, v1"); a("v_lshrrev_b32 v6, 3, v1"); a("v_lshl_add_u32 v5, v6, 7, v5"); a("v_cvt_f32_u32 v25, v5")
    a("v_lshrrev_b32 v5, 2, v1"); a("v_lshlrev_b32 v5, 7, v5"); a("v_and_b32 v6, 3, v1"); a("v_lshl_add_u32 v5, v6, 1, v5"); a("v_add_u32 v5, 0x100, v5")
    a("v_subrev_u32 v6, 8, v1"); a("v_lshrrev_b32 v7, 1, v6"); a("v_lshlrev_b32 v7, 7, v7"); a("v_and_b32 v6, 1, v6"); a("v_lshl_add_u32 v7, v6, 2, v7"); a("v_add_u32 v7, 0x200, v7")
    a("v_cmp_gt_u32 vcc, 8, v1"); a("v_cndmask_b32 v5, v7, v5, vcc"); a("v_cvt_f32_u32 v26, v5")
    a("v_lshlrev_b32 v5, 7, v1"); a("v_add_u32 v5, 0x400, v5"); a("v_cvt_f32_u32 v27, v5")
    a("v_mul_u32_u24 v28, 3200, v3"); a(f"v_add_u32 v28, {KTAB}, v28")
    a("v_and_b32 v5, 1, v2"); a("v_lshlrev_b32 v5, 2, v5"); a("v_lshrrev_b32 v6, 1, v2"); a("v_lshl_add_u32 v5, v6, 7, v5"); a("v_lshl_add_u32 v29, v1, 3, v5")
    a("v_lshlrev_b32 v5, 6, v2"); a("v_lshl_add_u32 v6, v1, 2, v5"); a("v_add_u32 v6, 256, v6"); a("v_lshl_add_u32 v7, v1, 1, v5"); a("v_add_u32 v7, 256, v7")
    a("v_cmp_gt_u32 vcc, 2, v2"); a("v_cndmask_b32 v30, v7, v6, vcc")
    a("v_mov_b32 v6, 32"); a("v_cndmask_b32 v6, v6, 2, vcc"); a("v_add_u32 v31, v30, v6")
    a("v_add_u32 v6, v5, v1"); a("v_add_u32 v32, 512, v6")
    for k,(b,o) in enumerate([(29,0),(29,1),(29,2),(29,3),(30,0),(30,1),(31,0),(31,1),(32,0),(32,16),(32,32),(32,48)]):
        a(f"v_add_u32 v5, {o}, v{b}"); a("v_lshrrev_b32 v6, 5, v5"); a("v_add_u32 v5, v5, v6"); a(f"v_lshl_add_u32 v{50+k}, v5, 2, v28")
    a("s_mov_b32 s77, 0x3fb8aa3b"); a("s_mov_b32 s78, 0xffff0000"); a("s_mov_b32 s79, 0x3e22f983")
    a("v_and_b32 v5, 0xff, v0"); a("v_lshlrev_b32 v5, 3, v5"); a("v_sub_u32 v5, 0x7ff, v5"); a("s_movk_i32 s67, 0xbd80")
    a("s_mul_i32 s64, s80, 12800"); a(f"s_add_u32 s64, s64, {KTAB}")
    for e in range(0,8,2):
        a(f"v_subrev_u32 v6, {e}, v5"); a(f"v_subrev_u32 v7, {e+1}, v5"); a("v_cvt_f32_u32 v72, v6"); a("v_cvt_f32_u32 v73, v7")
        a("v_cvt_pk_bf16_f32 v72, v72, v73"); a("v_lshrrev_b32 v73, 16, v72"); a("v_and_b32 v72, 0xffff, v72"); a("v_add_u32 v72, s67, v72"); a("v_add_u32 v73, s67, v73")
        a("v_cmp_gt_u32 vcc, 0x80, v6"); a("v_cndmask_b32 v72, v72, v6, vcc"); a("v_cmp_gt_u32 vcc, 0x80, v7"); a("v_cndmask_b32 v73, v73, v7, vcc")
        a("v_lshrrev_b32 v6, 5, v72"); a("v_add_u32 v72, v72, v6"); a("v_lshrrev_b32 v7, 5, v73"); a("v_add_u32 v73, v73, v7")
        a(f"v_lshl_add_u32 v{GI+e}, v72, 2, s64"); a(f"v_lshl_add_u32 v{GI+1+e}, v73, 2, s64")
    for i in range(4): a(f"v_mov_b32 v{128+i}, 0")
    a("v_lshrrev_b32 v5, 5, v0"); a(f"v_mul_u32_u24 v5, {KRB}, v5"); a("v_and_b32 v6, 31, v0"); a("v_lshl_add_u32 v5, v6, 4, v5"); a(f"v_add_u32 v5, {KRBASE+4096}, v5")
    masked(a,"v_cmp_gt_u32 vcc, 0x80, v0",lambda: a("ds_write_b128 v5, v[128:131]"))
    a("v_and_b32 v108, 0xff, v0"); a("v_lshlrev_b32 v108, 4, v108"); a(f"s_mul_i32 s64, s80, {2*KRB}"); a(f"s_add_u32 s64, s64, {KRBASE}"); a("v_add_u32 v108, s64, v108")
def p1(a,vq,hooks={},st_=None):
    a("s_waitcnt lgkmcnt(0)")
    a("s_lshl_b32 s3, s80, 4"); a("s_lshr_b32 s3, s82, s3"); a("s_lshl_b32 s3, s3, 16")
    a("v_mov_b32 v33, s3"); a("v_mul_f32 v33, s77, v33"); a("v_exp_f32 v33, v33"); a("v_cvt_pk_bf16_f32 v33, v33, v33"); a("v_and_b32 v33, s78, v33"); a("v_add_f32 v34, v33, v33")
    A=38
    for i in range(12): a(f"v_mov_b32 v{A+i}, 0")
    def valu(n):
        P=224; q=n>>1; T=132+22*(n&3); D=33; o=[]
        def unp(dst,src): o.append(f"v_and_b32 v{dst}, s78, v{src+q}" if n&1 else f"v_lshlrev_b32 v{dst}, 16, v{src+q}")
        unp(T,P); unp(T+1,P+4); unp(T+2,P+8); unp(T+3,P+12)
        o+=[f"v_mul_f32 v{T}, s77, v{T}", f"v_exp_f32 v{T}, v{T}", f"v_mul_f32 v{T+1}, v{T+1}, v{D}", f"v_mul_f32 v{T+2}, v{T+2}, v{D+1}",
            f"v_cvt_pk_bf16_f32 v{T}, v{T}, v{T}", f"v_and_b32 v{T}, s78, v{T}", f"v_mul_f32 v{T+3}, v{T+3}, v{D+1}", f"v_mul_f32 v{T}, v{T}, v{D}",
            f"v_mul_f32 v{T+1}, s79, v{T+1}", f"v_mul_f32 v{T}, s77, v{T}"]
        for k in range(4): o+=[f"v_mul_f32 v{T+4+k}, -v{T}, v{24+k}", f"v_mul_f32 v{T+8+k}, v{T+1}, v{24+k}"]
        for k in range(4): o+=[f"v_exp_f32 v{T+4+k}, v{T+4+k}", f"v_fract_f32 v{T+8+k}, v{T+8+k}"]
        for k in range(4): o+=[f"v_cos_f32 v{T+12+k}, v{T+8+k}", f"v_sin_f32 v{T+16+k}, v{T+8+k}"]
        for k in range(4): o+=[f"v_mul_f32 v{T+12+k}, v{T+12+k}, v{T+4+k}", f"v_mul_f32 v{T+16+k}, v{T+16+k}, v{T+4+k}"]
        o+=[f"v_mul_f32 v{T+20}, v{T+2}, v{T+12}", f"v_mul_f32 v{T+21}, v{T+2}, v{T+16}", f"v_fma_f32 v{T+20}, -v{T+3}, v{T+16}, v{T+20}", f"v_fma_f32 v{T+21}, v{T+3}, v{T+12}, v{T+21}", f"v_sub_f32 v{T+21}, 0, v{T+21}"]
        return o
    def mfmas(n):
        T=132+22*(n&3)
        return [f"v_mfma_f32_16x16x4_f32 {R(A+4*tau)}, v{T+13+4*part+tau}, v{T+20+part}, {R(A+4*tau)}" for part in range(2) for tau in range(3)]
    vq.wait_for(a,lambda t:t==("P",0))
    pend=[]
    for n in range(0,8,2):
        if n in hooks: hooks[n]()
        o=[x for pr in zip(valu(n),valu(n+1)) for x in pr]
        for k,ins in enumerate(o):
            a(ins)
            if pend and k%8==4: a(pend.pop(0))
        while pend: a(pend.pop(0))
        pend=mfmas(n)+mfmas(n+1)
    st_(a,"k_pairs")
    while pend: a(pend.pop(0))
    if 8 in hooks: hooks[8]()
    st_(a,"k_flush")
    for i in range(12): a(f"ds_write_b32 v{50+i}, v{A+i}")
    a("s_waitcnt lgkmcnt(0)"); st_(a,"k_tw"); a("s_barrier"); st_(a,"k_bar")
    B0=64
    for e in range(8):
        for w in range(4): a(f"ds_read_b32 v{B0+4*e+w}, v{GI+e} offset:{3200*w}")
    a("s_waitcnt lgkmcnt(0)"); st_(a,"k_gat")
    for e in range(8):
        b=B0+4*e; a(f"v_add_f32 v{b}, v{b}, v{b+1}"); a(f"v_add_f32 v{b+2}, v{b+2}, v{b+3}"); a(f"v_add_f32 v{b}, v{b}, v{b+2}")
    O=110
    for p in range(4):
        x0=B0+8*p; x1=x0+4
        a(f"v_cvt_pk_bf16_f32 v{O+p}, v{x0}, v{x1}"); a(f"v_lshlrev_b32 v{O+8}, 16, v{O+p}"); a(f"v_and_b32 v{O+9}, s78, v{O+p}")
        a(f"v_sub_f32 v{O+8}, v{x0}, v{O+8}"); a(f"v_sub_f32 v{O+9}, v{x1}, v{O+9}"); a(f"v_cvt_pk_bf16_f32 v{O+4+p}, v{O+8}, v{O+9}")
    a(f"ds_write_b128 v108, {R(O)}"); a(f"ds_write_b128 v108, {R(O+4)} offset:{KRB}")
    a("s_waitcnt lgkmcnt(0)"); a("s_barrier")
def warm_w(a,vq):
    a("v_mul_u32_u24 v120, 0x5556, v0"); a("v_lshrrev_b32 v120, 16, v120"); a("v_mul_u32_u24 v121, 3, v120"); a("v_sub_u32 v121, v0, v121")
    a("s_and_b32 s64, s70, 7"); a("s_mul_i32 s64, s64, 44"); a("s_add_u32 s64, s64, 160")
    a("v_add_u32 v120, s64, v120"); a("v_mul_u32_u24 v120, 3584, v120"); a("v_mul_u32_u24 v121, 110, v121"); a("v_and_b32 v121, 0xfffffffc, v121")
    a("s_mul_i32 s64, s71, 224"); a("v_add3_u32 v120, v120, v121, s64")
    def body(): a(f"buffer_load_dword v124, v120, {S4(WG)}, 0 offen"); a(f"buffer_load_dword v125, v120, {S4(WU)}, 0 offen")
    masked(a,"v_cmp_gt_u32 vcc, 132, v0",body)
def warm_wd(a,vq):
    a("s_lshr_b32 s64, s2, 6"); a("s_mul_i32 s64, s64, 448"); a("s_lshl_b32 s64, s64, 10")
    a("s_lshr_b32 s65, s2, 3"); a("s_and_b32 s65, s65, 7"); a("s_lshl_b32 s65, s65, 7"); a("s_add_u32 s64, s64, s65")
    a("v_lshlrev_b32 v121, 10, v0"); a("v_add_u32 v121, s64, v121")
    masked(a,"v_cmp_gt_u32 vcc, 448, v0",lambda: a(f"buffer_load_dword v126, v121, {S4(WD)}, 0 offen"))
def g1_setup(a):
    a("s_and_b32 s64, s2, 7"); a("s_lshr_b32 s65, s2, 3")
    a("s_and_b32 s70, s64, 1"); a("s_lshl_b32 s70, s70, 3"); a("s_and_b32 s66, s65, 7"); a("s_add_u32 s70, s70, s66")
    a("s_lshr_b32 s71, s64, 1"); a("s_lshl_b32 s71, s71, 2"); a("s_lshr_b32 s66, s65, 3"); a("s_add_u32 s71, s71, s66")
    a("v_mul_u32_u24 v8, 0x2493, v4"); a("v_lshrrev_b32 v8, 17, v8"); a("v_mul_u32_u24 v9, 14, v8"); a("v_sub_u32 v9, v4, v9")
    a("v_mul_u32_u24 v8, 3584, v8"); a("v_lshl_add_u32 v8, v9, 4, v8"); a("s_mul_i32 s66, s71, 224"); a("v_add_u32 v10, s66, v8")
    a("s_mul_i32 s72, s68, 14336"); a(f"s_mul_i32 s73, s68, {GSTR}")
def g1_setup2(a):
    a(f"v_mul_u32_u24 v5, {2*GSTR}, v2"); a("v_lshrrev_b32 v6, 2, v1"); a("v_mul_u32_u24 v6, 224, v6"); a("v_and_b32 v7, 3, v0"); a("v_lshl_add_u32 v6, v7, 3, v6")
    a("v_add_u32 v11, v5, v6"); a("s_lshl_b32 s66, s80, 7"); a("v_add_u32 v11, s66, v11")
    a("v_lshrrev_b32 v5, 3, v4"); a("v_and_b32 v6, 7, v4"); a("s_lshl_b32 s66, s70, 7"); a("s_lshl_b32 s67, s68, 4"); a("s_add_u32 s66, s66, s67")
    a("v_add_u32 v7, s66, v5"); a("v_lshlrev_b32 v7, 10, v7"); a("v_xor_b32 v8, v6, v2"); a("v_lshl_add_u32 v12, v8, 4, v7"); a("v_xor_b32 v8, 4, v8"); a("v_lshl_add_u32 v13, v8, 4, v7")
    a("s_lshl_b32 s74, s68, 11"); a(f"s_add_u32 s74, s74, {ARING}")
    a("s_lshl_b32 s66, s69, 12"); a(f"s_add_u32 s66, s66, {ARING}")
    a("v_lshrrev_b32 v7, 1, v1"); a("v_xor_b32 v8, v2, v7"); a("v_lshlrev_b32 v9, 7, v1"); a("v_add_u32 v9, s66, v9")
    a("v_lshl_add_u32 v14, v8, 4, v9"); a("v_xor_b32 v8, 4, v8"); a("v_lshl_add_u32 v15, v8, 4, v9")
    a(f"v_add_u32 v8, {3*STG}, v11")
def g1_bdma_l(s):
    return [([f"s_add_u32 s66, s72, {s*114688}", f"s_add_u32 m0, s73, {BRING+(s%NSTB)*STG+mat*MATB}", "s_mov_b32 exec_hi, 0x00ffffff",
              f"buffer_load_dwordx4 v10, {S4((WG,WU)[mat])}, s66 offen lds", "s_mov_b32 exec_hi, -1"],("B",s)) for mat in range(2)]
def g1_adma_l(c):
    return [([f"s_mov_b32 s66, {q*8192+c*128}", f"s_add_u32 m0, s74, {(c%NSTA)*ASLOT+q*1024}", f"buffer_load_dwordx4 v{12+q}, {S4(XN)}, s66 offen{SC} lds"],("A",c)) for q in range(2)]
def emit_g(a,vq,g):
    for l in g[0]: a(l)
    vq.issue(g[1])
def g1_bdma(a,vq,s):
    for g in g1_bdma_l(s): emit_g(a,vq,g)
def g1_adma(a,vq,c):
    for g in g1_adma_l(c): emit_g(a,vq,g)
BF=lambda st,mat,j: 16+32*st+16*mat+4*j
AC=lambda rt,mat,j: 128+32*rt+16*mat+4*j
AF=lambda st,rt: 80+8*st+4*rt
def g1_reads(s,NJ):
    st=s&1; out=[f"ds_read_b128 {R(AF(st,rt))}, v{14+(s&1)} offset:{((s>>1)%NSTA)*ASLOT+rt*2048}" for rt in range(2)]
    for j in range(NJ):
        for mat in range(2):
            for h in range(2):
                out.append(f"ds_read_b64_tr_b16 {R(BF(st,mat,j)+2*h,2)}, v{11 if (s%NSTB)<3 else 8} offset:{BRING+((s%NSTB)%3)*STG+mat*MATB+h*GSTR+32*j}")
    return out
def g1_path(a,vq,st_,NJ,dup,hooks={}):
    for i in range(64): a(f"v_mov_b32 v{128+i}, 0")
    vq.wait_for(a,lambda t:t in(("B",0),("A",0))); a("s_barrier"); st_(a,"g1_loop",dup)
    for l in g1_reads(0,NJ): a(l)
    for s in range(16):
        st=s&1
        if s==8: st_(a,"g1_s8",dup)
        vq.wait_for(a,lambda t:t==("B",s+1) or t==("A",(s+1)>>1)); a("s_waitcnt lgkmcnt(0)"); a("s_barrier")
        if s in hooks: hooks[s]()
        dm=[]
        if s+NSTB<16: dm+=g1_bdma_l(s+NSTB)
        if s>=1 and ((s-1)>>1)+NSTA<8: dm+=g1_adma_l(((s-1)>>1)+NSTA)[(s-1)&1:((s-1)&1)+1]
        nxt=g1_reads(s+1,NJ) if s<15 else []; k=0
        for j in range(NJ):
            for mat in range(2):
                for rt in range(2):
                    d=AC(rt,mat,j)
                    a(f"v_mfma_f32_16x16x32_bf16 {R(d)}, {R(BF(st,mat,j))}, {R(AF(st,rt))}, {R(d)}")
                    if nxt: a(nxt.pop(0))
                    if nxt and j==0: a(nxt.pop(0))
                    if dm and k%4==1: emit_g(a,vq,dm.pop(0))
                    k+=1
        while nxt: a(nxt.pop(0))
        while dm: emit_g(a,vq,dm.pop(0))
    st_(a,"g1_epi",dup)
    a("s_barrier")
    st_(a,"e_bar",dup)
    RS=144
    a("s_mov_b32 s66, 0xffff0000"); a("s_mov_b32 s67, 0xbfb8aa3b"); a("s_mul_i32 s75, s68, 4608")
    a(f"v_mul_u32_u24 v5, {RS}, v1"); a("v_lshl_add_u32 v5, v2, 3, v5"); a("v_add_u32 v5, s75, v5")
    a("s_lshl_b32 s64, s70, 7"); a("s_lshl_b32 s65, s69, 5"); a("s_add_u32 s64, s64, s65"); a("s_mul_i32 s64, s64, 3584"); a("s_mul_i32 s65, s71, 224"); a("s_add_u32 s64, s64, s65"); a("s_lshl_b32 s65, s80, 7"); a("s_add_u32 s76, s64, s65")
    CH=2*NJ; NCH=32*CH; NI=NCH//64
    for i in range(NI):
        a(f"v_add_u32 v6, {64*i}, v4")
        if NJ==4: a("v_lshrrev_b32 v7, 3, v6"); a("v_and_b32 v9, 7, v6")
        else: a("v_mul_u32_u24 v7, 0x2aab, v6"); a("v_lshrrev_b32 v7, 16, v7"); a("v_mul_u32_u24 v9, 6, v7"); a("v_sub_u32 v9, v6, v9")
        a("v_mul_u32_u24 v6, 3584, v7"); a(f"v_lshl_add_u32 v{96+i}, v9, 4, v6")
        a(f"v_mul_u32_u24 v6, {RS}, v7"); a("v_lshl_add_u32 v6, v9, 4, v6"); a(f"v_add_u32 v{100+i}, s75, v6")
    for rt in range(2):
        for j in range(NJ):
            g=AC(rt,0,j); u=AC(rt,1,j); T=16+16*(j&1)
            a(f"v_cvt_pk_bf16_f32 v{T}, v{g}, v{g+1}"); a(f"v_cvt_pk_bf16_f32 v{T+1}, v{g+2}, v{g+3}")
            a(f"v_lshlrev_b32 v{T+2}, 16, v{T}"); a(f"v_and_b32 v{T+3}, s66, v{T}"); a(f"v_lshlrev_b32 v{T+4}, 16, v{T+1}"); a(f"v_and_b32 v{T+5}, s66, v{T+1}")
            for k in range(4): a(f"v_mul_f32 v{T+6+k}, s67, v{T+2+k}")
            for k in range(4): a(f"v_exp_f32 v{T+6+k}, v{T+6+k}")
            a(f"v_cvt_pk_bf16_f32 v{T}, v{u}, v{u+1}"); a(f"v_cvt_pk_bf16_f32 v{T+1}, v{u+2}, v{u+3}")
            a(f"v_lshlrev_b32 v{T+10}, 16, v{T}"); a(f"v_and_b32 v{T+11}, s66, v{T}"); a(f"v_lshlrev_b32 v{T+12}, 16, v{T+1}"); a(f"v_and_b32 v{T+13}, s66, v{T+1}")
            for k in range(4): a(f"v_add_f32 v{T+6+k}, 1.0, v{T+6+k}")
            for k in range(4): a(f"v_rcp_f32 v{T+6+k}, v{T+6+k}")
            for k in range(4): a(f"v_mul_f32 v{T+2+k}, v{T+2+k}, v{T+6+k}")
            a(f"v_cvt_pk_bf16_f32 v{T}, v{T+2}, v{T+3}"); a(f"v_cvt_pk_bf16_f32 v{T+1}, v{T+4}, v{T+5}")
            a(f"v_lshlrev_b32 v{T+2}, 16, v{T}"); a(f"v_and_b32 v{T+3}, s66, v{T}"); a(f"v_lshlrev_b32 v{T+4}, 16, v{T+1}"); a(f"v_and_b32 v{T+5}, s66, v{T+1}")
            for k in range(4): a(f"v_mul_f32 v{T+2+k}, v{T+2+k}, v{T+10+k}")
            a(f"v_cvt_pk_bf16_f32 v{T+14}, v{T+2}, v{T+3}"); a(f"v_cvt_pk_bf16_f32 v{T+15}, v{T+4}, v{T+5}")
            a(f"ds_write_b64 v5, {R(T+14,2)} offset:{rt*16*RS+32*j}")
    st_(a,"e_valu",dup)
    a("s_waitcnt lgkmcnt(0)")
    for i in range(NI): a(f"ds_read_b128 {R(104+4*i)}, v{100+i}")
    for i in range(4):
        if i<NI:
            a(f"s_waitcnt lgkmcnt({NI-1-i})"); a(f"buffer_store_dwordx4 {R(104+4*i)}, v{96+i}, {S4(HH)}, s76 offen{SC}")
    st_(a,"e_st",dup)
    for i in range(3): vq.issue(("S",1))
def conv_loads(a,vq):
    a(f"s_mul_i32 s3, s2, {2*XNT_STRIDE}"); a(f"s_mul_i32 s66, s80, {XNT_STRIDE}"); a("s_add_u32 s66, s66, s3")
    a("v_and_b32 v5, 0xff, v0"); a("v_lshlrev_b32 v5, 4, v5"); a("v_add_u32 v6, s66, v5")
    a("v_lshrrev_b32 v7, 1, v0"); a(f"v_mul_u32_u24 v7, {XNT_STRIDE}, v7"); a("v_and_b32 v9, 1, v0"); a("v_lshl_add_u32 v7, v9, 4, v7"); a("v_add_u32 v7, 4096, v7"); a("v_add_u32 v7, s3, v7")
    def body():
        for q in range(5): a(f"buffer_load_dwordx4 {R(228+4*q)}, v7, {S4(XNT)}, 0 offen offset:{4*q}{SC}")
    masked(a,"v_cmp_gt_u32 vcc, 4, v0",body)
    for q in range(5): a(f"buffer_load_dwordx4 {R(208+4*q)}, v6, {S4(XNT)}, 0 offen offset:{4*q}{SC}"); vq.issue(("U",0))
def conv(a,vq,st_,hook_b1=None,hook_end=None):
    a("v_and_b32 v5, 0xff, v0"); a("v_lshlrev_b32 v5, 4, v5"); a(f"s_mul_i32 s66, s80, {UB}"); a("v_add_u32 v5, s66, v5")
    a("v_lshrrev_b32 v7, 1, v0"); a("v_and_b32 v9, 1, v0"); a(f"v_mul_u32_u24 v10, {UB}, v7"); a("v_lshl_add_u32 v10, v9, 4, v10"); a("v_add_u32 v10, 4096, v10")
    def copies(base,vaddr):
        for s in range(8):
            q=s>>1
            if s&1:
                for k in range(4): a(f"v_alignbit_b32 v{16+4*q+k}, v{base+4*(q+1)+k}, v{base+4*q+k}, 16")
                src=16+4*q
            else: src=base+4*q
            a(f"ds_write_b128 v{vaddr}, {R(src)} offset:{s*CSTR+16*COFF[s]}")
    a("v_add_u32 v6, 1, v1"); a("v_and_b32 v7, 7, v6"); a(f"v_mul_u32_u24 v8, {CSTR}, v7")
    pk=sum(c<<(4*i) for i,c in enumerate(COFF)); a(f"s_mov_b32 s67, {pk}")
    a("v_lshlrev_b32 v9, 2, v7"); a("v_lshrrev_b32 v9, v9, s67"); a("v_and_b32 v9, 15, v9"); a("v_lshl_add_u32 v8, v9, 4, v8")
    a("v_and_b32 v6, 0x18, v6"); a("v_lshl_add_u32 v6, v2, 3, v6"); a("v_lshl_add_u32 v8, v6, 1, v8")
    a("s_lshl_b32 s64, s69, 7"); a("s_add_u32 s64, s64, s66"); a("v_add_u32 v11, s64, v8")
    a("v_lshlrev_b32 v6, 5, v1"); a("v_lshlrev_b32 v7, 4, v2"); a("v_sub_u32 v6, v7, v6")
    a(f"s_mul_i32 s64, s80, {2*KRB}"); a("s_lshl_b32 s65, s69, 7"); a("s_add_u32 s64, s64, s65"); a(f"s_add_u32 s64, s64, {KRBASE+2*2032-64*56}"); a("v_add_u32 v12, s64, v6")
    vq.wait_for(a,lambda t:t==("U",0)); st_(a,"cv_copies")
    copies(208,5); masked(a,"v_cmp_gt_u32 vcc, 4, v0",lambda: copies(228,10))
    for i in range(32): a(f"v_mov_b32 v{224+i}, 0")
    a("s_waitcnt lgkmcnt(0)"); a("s_barrier"); st_(a,"cv_main")
    acc=lambda C: R(224+4*C)
    RA=lambda st,i: R(16+96*st+4*i); RH=lambda st,i: R(48+96*st+4*i); RL=lambda st,i: R(80+96*st+4*i)
    def loads(st,b):
        out=[]
        for i in range(8):
            out+=[f"ds_read_b128 {RA(st,i)}, v11 offset:{512*i+64*b}", f"ds_read_b128 {RH(st,i)}, v12 offset:{64*(b-8*i+56)}", f"ds_read_b128 {RL(st,i)}, v12 offset:{64*(b-8*i+56)+KRB}"]
        return out
    for l in loads(0,0): a(l)
    for b in range(2):
        nxt=loads(1,1) if b==0 else []
        if b==1 and hook_b1: hook_b1()
        a("s_waitcnt lgkmcnt(0)"); k=0
        for C in range(8):
            for ap in range(C+1):
                m=C-ap
                a(f"v_mfma_f32_16x16x32_bf16 {acc(C)}, {RA(b,ap)}, {RH(b,m)}, {acc(C)}"); a(f"v_mfma_f32_16x16x32_bf16 {acc(C)}, {RA(b,ap)}, {RL(b,m)}, {acc(C)}")
                if nxt and k>=4: a(nxt.pop(0))
                k+=1
        while nxt: a(nxt.pop(0))
    st_(a,"cv_xchg")
    a("v_lshlrev_b32 v5, 4, v4"); a("s_lshl_b32 s64, s68, 13"); a(f"s_add_u32 s64, s64, {CXCH}"); a("v_add_u32 v6, s64, v5")
    for C in range(8): a(f"ds_write_b128 v6, {acc(C)} offset:{1024*C}")
    a("s_lshl_b32 s64, s80, 15"); a("s_lshl_b32 s65, s69, 11"); a("s_add_u32 s64, s64, s65"); a(f"s_add_u32 s64, s64, {CXCH}"); a("v_add_u32 v7, s64, v5")
    a("s_waitcnt lgkmcnt(0)"); st_(a,"x_w")
    if hook_end: hook_end()
    else: a("s_barrier")
    st_(a,"x_bar")
    for ww in range(4):
        for c in range(2): a(f"ds_read_b128 {R(16+8*ww+4*c)}, v7 offset:{8192*ww+1024*c}")
    a("s_lshl_b32 s64, s68, 10"); a("v_lshlrev_b32 v8, 5, v1"); a("v_lshl_add_u32 v8, v2, 3, v8"); a("v_add_u32 v8, s64, v8"); a("v_add_u32 v9, s64, v5")
    a("s_lshl_b32 s3, s2, 13"); a("s_add_u32 s3, s3, s64"); a("v_add_u32 v10, s3, v5")
    a("s_waitcnt lgkmcnt(0)")
    for c in range(2):
        for k in range(4):
            b=16+4*c+k; a(f"v_add_f32 v{b}, v{b}, v{b+8}"); a(f"v_add_f32 v{b+16}, v{b+16}, v{b+24}"); a(f"v_add_f32 v{b}, v{b}, v{b+16}")
        a(f"v_cvt_pk_bf16_f32 v{48+2*c}, v{16+4*c}, v{17+4*c}"); a(f"v_cvt_pk_bf16_f32 v{49+2*c}, v{18+4*c}, v{19+4*c}")
        a(f"ds_write_b64 v8, {R(48+2*c,2)} offset:{512*c}")
    a("s_waitcnt lgkmcnt(0)"); a("ds_read_b128 v[52:55], v9"); a("s_waitcnt lgkmcnt(0)")
    a(f"buffer_store_dwordx4 v[52:55], v10, {S4(YT)}, 0 offen{SC}"); vq.issue(("S",2))
PHI=[0,2,3,1]
def g2_setup(a):
    a("s_and_b32 s64, s2, 7"); a("s_lshr_b32 s65, s2, 3"); a("s_lshl_b32 s70, s64, 2"); a("s_lshr_b32 s66, s65, 3"); a("s_add_u32 s70, s70, s66"); a("s_and_b32 s71, s65, 7")
    a("s_lshl_b32 s72, s70, 6"); a("s_lshl_b32 s73, s71, 7"); a(f"s_mul_i32 s75, s68, {WB}")
    pk=sum(c<<(2*i) for i,c in enumerate(PHI)); a(f"s_mov_b32 s67, {pk}")
    a("v_lshrrev_b32 v5, 2, v4"); a("v_add_u32 v5, s72, v5"); a("v_mul_u32_u24 v5, 3584, v5"); a("s_mul_i32 s66, s68, 448"); a("v_add_u32 v5, s66, v5")
    a("v_lshlrev_b32 v6, 1, v2"); a("v_lshrrev_b32 v6, v6, s67"); a("v_and_b32 v6, 3, v6"); a("v_and_b32 v7, 3, v4"); a("v_xor_b32 v6, v6, v7"); a("v_lshl_add_u32 v10, v6, 4, v5")
    a("v_lshrrev_b32 v5, 3, v4"); a("v_and_b32 v6, 7, v4"); a("s_mul_i32 s66, s68, 224"); a("v_add_u32 v7, s66, v5"); a("v_lshlrev_b32 v7, 10, v7"); a("v_add_u32 v7, s73, v7")
    a("v_and_b32 v8, 1, v2"); a("v_lshlrev_b32 v8, 1, v8"); a("v_xor_b32 v8, v6, v8"); a("v_lshl_add_u32 v12, v8, 4, v7"); a("v_xor_b32 v8, 4, v8"); a("v_lshl_add_u32 v13, v8, 4, v7")
    a("s_lshl_b32 s74, s68, 3"); a("s_add_u32 s66, s72, s74"); a("v_add_u32 v7, s66, v5"); a("v_lshlrev_b32 v7, 10, v7"); a("v_lshl_add_u32 v7, v6, 4, v7"); a("v_add_u32 v14, s73, v7")
    a("s_lshl_b32 s66, s71, 6"); a("s_add_u32 s66, s66, s74"); a("v_add_u32 v7, s66, v5"); a("v_lshlrev_b32 v7, 12, v7"); a("v_lshl_add_u32 v7, v6, 4, v7"); a("s_lshl_b32 s66, s72, 1"); a("v_add_u32 v15, s66, v7")
    a("v_lshrrev_b32 v6, 2, v1"); a("v_lshlrev_b32 v6, 1, v6"); a("v_lshrrev_b32 v6, v6, s67"); a("v_and_b32 v6, 3, v6"); a("v_xor_b32 v6, v6, v2"); a("v_lshlrev_b32 v7, 6, v1"); a("v_lshl_add_u32 v16, v6, 4, v7"); a("v_add_u32 v16, s75, v16")
    a("v_lshrrev_b32 v7, 2, v1"); a("v_lshl_add_u32 v8, v2, 3, v7"); a("v_lshlrev_b32 v8, 7, v8"); a("v_and_b32 v9, 1, v0"); a("v_lshl_add_u32 v8, v9, 3, v8"); a("v_add_u32 v8, s75, v8")
    a("v_bfe_u32 v9, v1, 3, 1"); a("v_lshlrev_b32 v9, 1, v9"); a("v_and_b32 v7, 1, v2"); a("v_lshl_add_u32 v9, v7, 2, v9"); a("v_bfe_u32 v7, v0, 1, 1"); a("v_xor_b32 v9, v9, v7")
    for j in range(4): a(f"v_xor_b32 v7, {2*j}, v9"); a(f"v_lshl_add_u32 v{18+j}, v7, 4, v8")
    a("s_lshl_b32 s76, s68, 10"); a(f"s_add_u32 s76, s76, {EP}")
def g2(a,vq,st_,hook0=None):
    def dma_l(c):
        out=[]
        for q in range(4):
            out.append(([f"s_mov_b32 s66, {q*57344+c*64}", f"s_add_u32 m0, s75, {(c&1)*8192+q*1024}", f"buffer_load_dwordx4 v10, {S4(HH)}, s66 offen{SC} lds"],("C",c)))
            out.append(([f"s_mov_b32 s66, {(c*32+8*q)*1024}", f"s_add_u32 m0, s75, {(c&1)*8192+4096+q*1024}", f"buffer_load_dwordx4 v{12+(q&1)}, {S4(WD)}, s66 offen lds"],("C",c)))
        return out
    def etile(ti,sr,vo,sc):
        a(f"s_add_u32 m0, s76, {ti*8192}"); a(f"buffer_load_dwordx4 v{vo}, {S4(sr)}, 0 offen{sc} lds"); vq.issue(("E",0))
    for c in range(2):
        for g in dma_l(c): emit_g(a,vq,g)
    if hook0: hook0()
    etile(0,X,14,""); etile(1,XN,14,SC)
    a("s_lshl_b32 s66, s80, 6"); a("s_add_u32 s66, s66, s73"); a("v_lshlrev_b32 v7, 3, v2"); a("v_add_u32 v7, s66, v7")
    for j in range(2): a(f"buffer_load_dwordx2 {R(24+2*j,2)}, v7, {S4(DSK)}, 0 offen offset:{32*j}"); vq.issue(("E",0))
    ACC=lambda j,t: 64+16*j+4*t; HF=lambda t: 128+4*t; WF=lambda j: 144+4*j
    for i in range(64): a(f"v_mov_b32 v{64+i}, 0")
    for c in range(7):
        if c==3:
            a("s_and_b32 s64, s2, 7"); a("s_lshl_b32 s64, s64, 10"); a("s_lshl_b32 s65, s71, 7"); a("s_add_u32 s64, s64, s65"); a(f"s_add_u32 s64, s64, {2*8192}")
            a("v_and_b32 v22, 31, v4"); a("v_lshlrev_b32 v22, 2, v22"); a("v_add_u32 v22, s64, v22"); poll_issue(a,vq,22,23,("PY",0))
        if c==5: poll_check(a,vq,22,23,("PY",0)); etile(2,YT,15,SC)
        vq.wait_for(a,lambda t:t==("C",c))
        if c==0: st_(a,"g2_loop")
        bo=(c&1)*8192
        for t in range(4):
            a(f"ds_read_b128 {R(HF(t))}, v16 offset:{bo+t*1024}")
            for h in range(2): a(f"ds_read_b64_tr_b16 {R(WF(t)+2*h,2)}, v{18+t} offset:{bo+4096+h*512}")
        a("s_waitcnt lgkmcnt(0)")
        dm=dma_l(c+2) if c+2<7 else []
        for j in range(4):
            for t in range(4):
                d=ACC(j,t); a(f"v_mfma_f32_16x16x32_bf16 {R(d)}, {R(WF(j))}, {R(HF(t))}, {R(d)}")
                if dm and t&1: emit_g(a,vq,dm.pop(0))
    st_(a,"g2_epi")
    a("v_lshlrev_b32 v7, 4, v4"); a("v_add_u32 v8, s75, v7")
    for t in range(4):
        for j in range(4): a(f"ds_write_b128 v8, {R(ACC(j,t))} offset:{(t*4+j)*1024}")
    a("s_waitcnt lgkmcnt(0)"); vq.drain(a); a("s_barrier")
    a("s_lshl_b32 s66, s69, 12"); a("s_lshl_b32 s65, s80, 11"); a("s_add_u32 s66, s66, s65"); a("v_add_u32 v8, s66, v7"); a(f"v_add_u32 v9, {4*WB}, v8")
    for ww in range(8):
        for j in range(2): a(f"ds_read_b128 {R(64+8*ww+4*j)}, v{8+(ww>>2)} offset:{(ww&3)*WB+j*1024}")
    a("s_lshl_b32 s66, s69, 11"); a("s_lshl_b32 s65, s80, 6"); a("s_add_u32 s66, s66, s65"); a(f"s_add_u32 s66, s66, {EP}")
    a("v_lshlrev_b32 v5, 7, v1"); a("v_lshl_add_u32 v5, v2, 3, v5"); a("v_add_u32 v5, s66, v5")
    for j in range(2): a(f"ds_read_b64 {R(128+2*j,2)}, v5 offset:{32*j}"); a(f"ds_read_b64 {R(136+2*j,2)}, v5 offset:{8192+32*j}")
    a("v_lshrrev_b32 v6, 2, v1"); a("v_lshl_add_u32 v6, v2, 2, v6"); a("v_lshlrev_b32 v6, 7, v6"); a("v_and_b32 v7, 3, v0"); a("v_lshl_add_u32 v6, v7, 3, v6")
    a("s_lshl_b32 s66, s69, 5"); a("s_lshl_b32 s65, s80, 12"); a("s_add_u32 s66, s66, s65"); a(f"s_add_u32 s66, s66, {EP+16384}"); a("v_add_u32 v6, s66, v6")
    for j in range(2): a(f"ds_read_b64_tr_b16 {R(144+2*j,2)}, v6 offset:{2048*j}")
    a("s_mov_b32 s67, 0xffff0000"); a("s_waitcnt lgkmcnt(0)")
    for j in range(2):
        for i in range(4):
            b=64+4*j+i
            for o in (0,16,32,48): a(f"v_add_f32 v{b+o}, v{b+o}, v{b+o+8}")
            a(f"v_add_f32 v{b}, v{b}, v{b+16}"); a(f"v_add_f32 v{b+32}, v{b+32}, v{b+48}"); a(f"v_add_f32 v{b}, v{b}, v{b+32}")
        for p in range(2):
            b=64+4*j+2*p; Xr=128+2*j+p; XNr=136+2*j+p; Y=144+2*j+p; D=24+2*j+p
            a(f"v_cvt_pk_bf16_f32 v160, v{b}, v{b+1}")
            a(f"v_lshlrev_b32 v161, 16, v{XNr}"); a(f"v_and_b32 v162, s67, v{XNr}"); a(f"v_lshlrev_b32 v163, 16, v{D}"); a(f"v_and_b32 v164, s67, v{D}")
            a("v_mul_f32 v161, v161, v163"); a("v_mul_f32 v162, v162, v164"); a("v_cvt_pk_bf16_f32 v161, v161, v162")
            for src in (Y,Xr):
                a("v_lshlrev_b32 v162, 16, v161"); a("v_and_b32 v161, s67, v161"); a(f"v_lshlrev_b32 v163, 16, v{src}"); a(f"v_and_b32 v164, s67, v{src}")
                a("v_add_f32 v162, v163, v162"); a("v_add_f32 v161, v164, v161"); a("v_cvt_pk_bf16_f32 v161, v162, v161")
            a("v_lshlrev_b32 v162, 16, v161"); a("v_and_b32 v161, s67, v161"); a("v_lshlrev_b32 v163, 16, v160"); a("v_and_b32 v164, s67, v160")
            a("v_add_f32 v162, v162, v163"); a("v_add_f32 v161, v161, v164"); a(f"v_cvt_pk_bf16_f32 v{152+2*j+p}, v162, v161")
        a(f"ds_write_b64 v5, {R(152+2*j,2)} offset:{32*j}")
    a("v_lshlrev_b32 v7, 4, v4"); a("v_add_u32 v7, s76, v7"); a("s_waitcnt lgkmcnt(0)"); a("s_barrier")
    a("ds_read_b128 v[64:67], v7"); a("s_waitcnt lgkmcnt(0)")
    a(f"buffer_store_dwordx4 v[64:67], v14, {S4(OUT)}, 0 offen")
NAME="parallel_sum__ssm_conv_s4d__swiglu_ffn__prompt_kernel"
def build():
    a=Asm(); vq=VmQ(); st=St(); n=NAME
    a(f"{n}:"); a("s_cmp_ge_u32 s2, 256"); a("s_cbranch_scc1 K_END"); st(a,"start")
    setup(a); token_publish(a); p0_addr(a)
    a("s_cmp_lg_u32 s80, 0"); a("s_cbranch_scc1 P0_B")
    p0_loads(a,vq); a("P0_B:")
    p1_loads(a,vq); g1_setup(a)
    a("s_cmp_lg_u32 s80, 0"); a("s_cbranch_scc1 P0_C")
    p1_setup(a); p0_compute(a,vq); vq.wait_for(a,lambda t:t==("P",0)); a("s_branch P0_J")
    a("P0_C:"); p0_prefetch(a); p1_setup(a); a("s_waitcnt vmcnt(21)")
    a("P0_J:"); st(a,"p1_start"); g1_setup2(a)
    def h0(): token_issue(a,vq)
    def h4(): st(a,"sig0"); token_get(a,vq); signal(a,vq,0,("S",0),5,True); st(a,"sig0e")
    def h8():
        a("s_and_b32 s64, s2, 7"); a("s_lshl_b32 s64, s64, 10"); a("v_lshlrev_b32 v16, 4, v4"); a("v_add_u32 v16, s64, v16"); poll_issue(a,vq,16,20,("PX",0),4)
    p1(a,vq,{0:h0,4:h4,8:h8},st); st(a,"p1_end")
    poll_check(a,vq,16,20,("PX",0),4); st(a,"pc0e")
    for c in range(3): g1_adma(a,vq,c)
    a("s_waitcnt vmcnt(6)")
    a("s_cmp_lg_u32 s80, 0"); a("s_cbranch_scc1 G1_B")
    v2=vq.copy()
    g1_path(a,vq,st,4,False,{15:lambda:conv_loads(a,vq)}); a("s_branch G1_J")
    a("G1_B:"); g1_path(a,v2,st,3,True,{15:lambda:conv_loads(a,v2)}); a("G1_J:")
    assert vq.q==v2.q
    a("s_barrier"); st(a,"cv_start")
    def h_sigH(): signal(a,vq,1,("S",1),13)
    def h_end():
        a("s_and_b32 s64, s2, 7"); a("s_lshl_b32 s64, s64, 1"); a("s_lshr_b32 s65, s2, 7"); a("s_add_u32 s64, s64, s65")
        a("s_and_b32 s65, s64, 7"); a("s_lshl_b32 s65, s65, 3"); a("s_lshr_b32 s64, s64, 3"); a("s_add_u32 s64, s64, s65"); a("s_lshl_b32 s64, s64, 2")
        a("s_and_b32 s65, s2, 7"); a("s_lshl_b32 s65, s65, 10"); a("s_add_u32 s64, s64, s65"); a("s_add_u32 s64, s64, 8192")
        a("v_bfe_u32 v212, v4, 2, 2"); a("v_lshlrev_b32 v212, 8, v212"); a("v_and_b32 v210, 3, v4"); a("v_lshl_add_u32 v210, v210, 3, v212"); a("v_add_u32 v210, s64, v210")
        poll_issue(a,vq,210,211,("PH",0)); a("s_barrier")
    conv(a,vq,st,h_sigH,h_end)
    st(a,"x_end"); poll_check(a,vq,210,211,("PH",0)); st(a,"x_pc")
    g2_setup(a); st(a,"g2_start")
    g2(a,vq,st,lambda: signal(a,vq,2,("S",2))); st(a,"end"); st.dump(a)
    a("K_END:"); a("s_endpgm")
    return a.render()
if __name__=="__main__":
    HDR=open("parallel_sum__ssm_conv_s4d__swiglu_ffn__prompt.s.ref").read().split("; Override launch")[0]
    s=HDR+"; @launch grid=(256,1,1) block=(512,1,1) lds=163840\n"+'.amdgcn_target "amdgcn-amd-amdhsa--gfx950"\n.text\n'+f".globl {NAME}\n.p2align 8\n.type {NAME},@function\n"+build()
    s+=f'''.section .rodata,"a"
.p2align 6
.amdhsa_kernel {NAME}
  .amdhsa_next_free_vgpr 256
  .amdhsa_next_free_sgpr 102
  .amdhsa_accum_offset 256
  .amdhsa_group_segment_fixed_size 0
  .amdhsa_kernarg_size 112
  .amdhsa_user_sgpr_count 2
  .amdhsa_user_sgpr_kernarg_segment_ptr 1
  .amdhsa_system_sgpr_workgroup_id_x 1
.end_amdhsa_kernel
'''
    open(sys.argv[1],"w").write(s)
```

```python
import os, sys
from asmlib import Asm
import m8
from m8 import VmQ, srd, R, S4, lab, masked, emit_g, X,XN,XNT,HH,YT,WG,WU,WD,OUT,DSK,DBG,FL, WS_XNT,WS_YT,WS_H,WS_FL,XNT_STRIDE,XNT_SIZE,GSTR,MATB,STG,KRB,COFF,CSTR,UB,PHI,SC
STAMPS=m8.STAMPS; SKIP=m8.SKIP
LDS=81920
NSTB=3; ARING=NSTB*STG; ASLOT=16384; NSTA=2; LNT=ARING+ASLOT
class St(m8.St):
    def dump(s,a):
        if not STAMPS: return
        a("s_load_dwordx2 s[4:5], s[0:1], 104"); a("s_waitcnt lgkmcnt(0) vmcnt(0)")
        srd(a,52,4,5,1<<20,add=(48<<20))
        a("v_lshrrev_b32 v1, 6, v0"); a("s_lshl_b32 s3, s2, 8"); a("v_lshlrev_b32 v1, 6, v1"); a("v_add_u32 v1, s3, v1")
        for i in range(s.n): a(f"v_mov_b32 v2, s{84+2*i}"); a(f"buffer_store_dword v2, v1, s[52:55], 0 offen offset:{4*i}")
        print("stamps:",s.names)
def setup(a):
    a("s_load_dwordx16 s[68:83], s[0:1], 0"); a("s_load_dwordx8 s[52:59], s[0:1], 64"); a("s_load_dwordx4 s[60:63], s[0:1], 96")
    a("v_and_b32 v1, 15, v0"); a("v_bfe_u32 v2, v0, 4, 2"); a("v_lshrrev_b32 v3, 6, v0"); a("v_and_b32 v4, 63, v0")
    a("s_waitcnt lgkmcnt(0)")
    srd(a,X,68,69,2<<20); srd(a,XN,62,63,2<<20); srd(a,XNT,62,63,XNT_SIZE,add=WS_XNT); srd(a,HH,62,63,2048*3584,add=WS_H)
    srd(a,YT,62,63,2<<20,add=WS_YT); srd(a,WG,52,53,512*3584); srd(a,WU,54,55,512*3584); srd(a,WD,56,57,1792*1024)
    srd(a,OUT,58,59,2<<20); srd(a,DSK,80,81,1024); srd(a,DBG,60,61,256); srd(a,FL,62,63,32768,add=WS_FL)
    a("v_readfirstlane_b32 s68, v3"); a("s_mov_b32 s81, s2"); a("s_and_b32 s2, s2, 255")
token_publish=m8.token_publish; token_issue=m8.token_issue; token_get=m8.token_get; poll_issue=m8.poll_issue; poll_check=m8.poll_check
def signal(a,vq,phase,tag,t=5):
    vq.wait_for(a,lambda x:x==tag); a("s_barrier")
    a(f"v_mov_b32 v{t}, s83"); a("s_lshl_b32 s64, s2, 2"); a(f"s_add_u32 s64, s64, {phase*8192}"); a(f"v_lshlrev_b32 v{t+1}, 10, v0"); a(f"v_add_u32 v{t+1}, s64, v{t+1}")
    masked(a,"v_cmp_gt_u32 vcc, 8, v0",lambda: a(f"buffer_store_dword v{t}, v{t+1}, {S4(FL)}, 0 offen sc1"))
def xn_poll_addr(a,v): a("s_and_b32 s64, s2, 7"); a("s_lshl_b32 s64, s64, 10"); a(f"v_lshlrev_b32 v{v}, 4, v4"); a(f"v_add_u32 v{v}, s64, v{v}")
def tile_ids(a):
    a("s_and_b32 s64, s2, 7"); a("s_lshr_b32 s65, s2, 3")
    a("s_and_b32 s70, s64, 1"); a("s_lshl_b32 s70, s70, 3"); a("s_and_b32 s66, s65, 7"); a("s_add_u32 s70, s70, s66")
    a("s_lshr_b32 s71, s64, 1"); a("s_lshl_b32 s71, s71, 2"); a("s_lshr_b32 s66, s65, 3"); a("s_add_u32 s71, s71, s66")
def f_p0(a,vq):
    m8.LNT=LNT
    m8.p0_addr(a); m8.p0_loads(a,vq)
def g1_setup(a):
    tile_ids(a)
    a("v_mul_u32_u24 v8, 0x2493, v4"); a("v_lshrrev_b32 v8, 17, v8"); a("v_mul_u32_u24 v9, 14, v8"); a("v_sub_u32 v9, v4, v9")
    a("v_mul_u32_u24 v8, 3584, v8"); a("v_lshl_add_u32 v8, v9, 4, v8"); a("s_mul_i32 s66, s71, 224"); a("v_add_u32 v10, s66, v8")
    a("s_mul_i32 s72, s68, 28672"); a(f"s_mul_i32 s73, s68, {2*GSTR}")
    a(f"v_mul_u32_u24 v5, {2*GSTR}, v2"); a("v_lshrrev_b32 v6, 2, v1"); a("v_mul_u32_u24 v6, 224, v6"); a("v_and_b32 v7, 3, v0"); a("v_lshl_add_u32 v6, v7, 3, v6"); a("v_add_u32 v11, v5, v6")
    a("v_lshrrev_b32 v5, 3, v4"); a("v_and_b32 v6, 7, v4"); a("s_lshl_b32 s66, s70, 7"); a("s_lshl_b32 s67, s68, 5"); a("s_add_u32 s66, s66, s67")
    a("v_add_u32 v7, s66, v5"); a("v_lshlrev_b32 v7, 10, v7"); a("v_xor_b32 v8, v6, v2"); a("v_lshl_add_u32 v12, v8, 4, v7"); a("v_xor_b32 v8, 4, v8"); a("v_lshl_add_u32 v13, v8, 4, v7")
    a("s_lshl_b32 s74, s68, 12"); a(f"s_add_u32 s74, s74, {ARING}")
    a("v_lshrrev_b32 v7, 1, v1"); a("v_xor_b32 v8, v2, v7"); a("v_lshlrev_b32 v9, 7, v1"); a("v_add_u32 v9, s74, v9")
    a("v_lshl_add_u32 v14, v8, 4, v9"); a("v_xor_b32 v8, 4, v8"); a("v_lshl_add_u32 v15, v8, 4, v9")
def bdma_l(s):
    return [([f"s_add_u32 s66, s72, {s*114688+gi*14336}", f"s_add_u32 m0, s73, {(s%NSTB)*STG+mat*MATB+gi*GSTR}", "s_mov_b32 exec_hi, 0x00ffffff",
              f"buffer_load_dwordx4 v10, {S4((WG,WU)[mat])}, s66 offen lds", "s_mov_b32 exec_hi, -1"],("B",s)) for mat in range(2) for gi in range(2)]
def adma_l(c):
    return [([f"s_mov_b32 s66, {q*8192+c*128}", f"s_add_u32 m0, s74, {(c%NSTA)*ASLOT+q*1024}", f"buffer_load_dwordx4 v{12+(q&1)}, {S4(XN)}, s66 offen{SC} lds"],("A",c)) for q in range(4)]
BF=lambda st,mat,j: 16+56*st+28*mat+4*j
AC=lambda rt,mat,j: 128+56*rt+28*mat+4*j
AF=lambda st,rt: 240+8*st+4*rt
def g1_reads(s):
    st=s&1; out=[f"ds_read_b128 {R(AF(st,rt))}, v{14+(s&1)} offset:{((s>>1)%NSTA)*ASLOT+rt*2048}" for rt in range(2)]
    for j in range(7):
        for mat in range(2):
            for h in range(2): out.append(f"ds_read_b64_tr_b16 {R(BF(st,mat,j)+2*h,2)}, v11 offset:{(s%NSTB)*STG+mat*MATB+h*GSTR+32*j}")
    return out
def g1_main(a,vq,st_):
    for i in range(112): a(f"v_mov_b32 v{128+i}, 0")
    vq.wait_for(a,lambda t:t in(("B",0),("A",0))); a("s_barrier"); st_(a,"g1_loop")
    for l in g1_reads(0): a(l)
    for s in range(16):
        st=s&1
        if s==8: st_(a,"g1_s8")
        vq.wait_for(a,lambda t:t==("B",s+1) or t==("A",(s+1)>>1)); a("s_waitcnt lgkmcnt(0)"); a("s_barrier")
        dm=[]
        if s&1 and (s>>1)+NSTA<8: dm+=adma_l((s>>1)+NSTA)
        if s+NSTB<16: dm+=bdma_l(s+NSTB)
        nxt=g1_reads(s+1) if s<15 else []; k=0
        for j in range(7):
            for mat in range(2):
                for rt in range(2):
                    d=AC(rt,mat,j)
                    a(f"v_mfma_f32_16x16x32_bf16 {R(d)}, {R(BF(st,mat,j))}, {R(AF(st,rt))}, {R(d)}")
                    if nxt: a(nxt.pop(0))
                    if nxt and j==0: a(nxt.pop(0))
                    if dm and k%3==1: emit_g(a,vq,dm.pop(0))
                    k+=1
        while dm: emit_g(a,vq,dm.pop(0))
def g1_epilogue(a,vq):
    a("s_mov_b32 s66, 0xffff0000"); a("s_mov_b32 s67, 0xbfb8aa3b")
    a("v_mul_u32_u24 v5, 240, v1"); a("v_lshl_add_u32 v5, v2, 3, v5"); a("v_add_u32 v5, s74, v5")
    a("s_lshl_b32 s64, s70, 7"); a("s_lshl_b32 s65, s68, 5"); a("s_add_u32 s64, s64, s65"); a("s_mul_i32 s64, s64, 3584"); a("s_mul_i32 s65, s71, 224"); a("s_add_u32 s75, s64, s65"); a("s_add_u32 s76, s75, 57344")
    for i in range(4):
        a(f"v_add_u32 v6, {64*i}, v4"); a("v_mul_u32_u24 v7, 0x2493, v6"); a("v_lshrrev_b32 v7, 17, v7"); a("v_mul_u32_u24 v9, 14, v7"); a("v_sub_u32 v9, v6, v9")
        a("v_mul_u32_u24 v6, 3584, v7"); a(f"v_lshl_add_u32 v{104+i}, v9, 4, v6")
        a("v_mul_u32_u24 v6, 240, v7"); a("v_lshl_add_u32 v6, v9, 4, v6"); a(f"v_add_u32 v{108+i}, s74, v6")
    for rt in range(2):
        for j in range(7):
            g=AC(rt,0,j); u=AC(rt,1,j); T=16+16*(j&1)
            a(f"v_cvt_pk_bf16_f32 v{T}, v{g}, v{g+1}"); a(f"v_cvt_pk_bf16_f32 v{T+1}, v{g+2}, v{g+3}")
            a(f"v_lshlrev_b32 v{T+2}, 16, v{T}"); a(f"v_and_b32 v{T+3}, s66, v{T}"); a(f"v_lshlrev_b32 v{T+4}, 16, v{T+1}"); a(f"v_and_b32 v{T+5}, s66, v{T+1}")
            for k in range(4): a(f"v_mul_f32 v{T+6+k}, s67, v{T+2+k}")
            for k in range(4): a(f"v_exp_f32 v{T+6+k}, v{T+6+k}")
            a(f"v_cvt_pk_bf16_f32 v{T}, v{u}, v{u+1}"); a(f"v_cvt_pk_bf16_f32 v{T+1}, v{u+2}, v{u+3}")
            a(f"v_lshlrev_b32 v{T+10}, 16, v{T}"); a(f"v_and_b32 v{T+11}, s66, v{T}"); a(f"v_lshlrev_b32 v{T+12}, 16, v{T+1}"); a(f"v_and_b32 v{T+13}, s66, v{T+1}")
            for k in range(4): a(f"v_add_f32 v{T+6+k}, 1.0, v{T+6+k}")
            for k in range(4): a(f"v_rcp_f32 v{T+6+k}, v{T+6+k}")
            for k in range(4): a(f"v_mul_f32 v{T+2+k}, v{T+2+k}, v{T+6+k}")
            a(f"v_cvt_pk_bf16_f32 v{T}, v{T+2}, v{T+3}"); a(f"v_cvt_pk_bf16_f32 v{T+1}, v{T+4}, v{T+5}")
            a(f"v_lshlrev_b32 v{T+2}, 16, v{T}"); a(f"v_and_b32 v{T+3}, s66, v{T}"); a(f"v_lshlrev_b32 v{T+4}, 16, v{T+1}"); a(f"v_and_b32 v{T+5}, s66, v{T+1}")
            for k in range(4): a(f"v_mul_f32 v{T+2+k}, v{T+2+k}, v{T+10+k}")
            a(f"v_cvt_pk_bf16_f32 v{T+14}, v{T+2}, v{T+3}"); a(f"v_cvt_pk_bf16_f32 v{T+15}, v{T+4}, v{T+5}")
            a(f"ds_write_b64 v5, {R(T+14,2)} offset:{rt*ASLOT+32*j}")
        a("s_waitcnt lgkmcnt(0)")
        for q in range(4):
            if q==3: a("s_mov_b32 exec_hi, 0")
            a(f"ds_read_b128 {R(112+4*q)}, v{108+q} offset:{rt*ASLOT}")
        a("s_mov_b32 exec_hi, -1")
        for q in range(4):
            a(f"s_waitcnt lgkmcnt({3-q})")
            if q==3: a("s_mov_b32 exec_hi, 0")
            a(f"buffer_store_dwordx4 {R(112+4*q)}, v{104+q}, {S4(HH)}, s{75+rt} offen{SC}"); vq.issue(("S",1))
        a("s_mov_b32 exec_hi, -1")
WB=16384; EPX=65536
def g2_setup(a):
    a("s_and_b32 s64, s2, 7"); a("s_lshr_b32 s65, s2, 3"); a("s_lshl_b32 s70, s64, 2"); a("s_lshr_b32 s66, s65, 3"); a("s_add_u32 s70, s70, s66"); a("s_and_b32 s71, s65, 7")
    a("s_lshl_b32 s72, s70, 6"); a("s_lshl_b32 s73, s71, 7"); a(f"s_mul_i32 s75, s68, {WB}")
    pk=sum(c<<(2*i) for i,c in enumerate(PHI)); a(f"s_mov_b32 s67, {pk}")
    a("v_lshrrev_b32 v5, 2, v4"); a("v_add_u32 v5, s72, v5"); a("v_mul_u32_u24 v5, 3584, v5"); a("s_mul_i32 s66, s68, 896"); a("v_add_u32 v5, s66, v5")
    a("v_lshlrev_b32 v6, 1, v2"); a("v_lshrrev_b32 v6, v6, s67"); a("v_and_b32 v6, 3, v6"); a("v_and_b32 v7, 3, v4"); a("v_xor_b32 v6, v6, v7"); a("v_lshl_add_u32 v10, v6, 4, v5")
    a("v_lshrrev_b32 v5, 3, v4"); a("v_and_b32 v6, 7, v4"); a("s_mul_i32 s66, s68, 448"); a("v_add_u32 v7, s66, v5"); a("v_lshlrev_b32 v7, 10, v7"); a("v_add_u32 v7, s73, v7")
    a("v_and_b32 v8, 1, v2"); a("v_lshlrev_b32 v8, 1, v8"); a("v_xor_b32 v8, v6, v8"); a("v_lshl_add_u32 v12, v8, 4, v7"); a("v_xor_b32 v8, 4, v8"); a("v_lshl_add_u32 v13, v8, 4, v7")
    a("s_lshl_b32 s74, s68, 4"); a("s_add_u32 s66, s72, s74"); a("v_add_u32 v7, s66, v5"); a("v_lshlrev_b32 v7, 10, v7"); a("v_lshl_add_u32 v7, v6, 4, v7"); a("v_add_u32 v14, s73, v7")
    a("s_lshl_b32 s66, s71, 6"); a("s_add_u32 s66, s66, s74"); a("v_add_u32 v7, s66, v5"); a("v_lshlrev_b32 v7, 12, v7"); a("v_lshl_add_u32 v7, v6, 4, v7"); a("s_lshl_b32 s66, s72, 1"); a("v_add_u32 v15, s66, v7")
    a("v_lshrrev_b32 v6, 2, v1"); a("v_lshlrev_b32 v6, 1, v6"); a("v_lshrrev_b32 v6, v6, s67"); a("v_and_b32 v6, 3, v6"); a("v_xor_b32 v6, v6, v2"); a("v_lshlrev_b32 v7, 6, v1"); a("v_lshl_add_u32 v16, v6, 4, v7"); a("v_add_u32 v16, s75, v16")
    a("v_lshrrev_b32 v7, 2, v1"); a("v_lshl_add_u32 v8, v2, 3, v7"); a("v_lshlrev_b32 v8, 7, v8"); a("v_and_b32 v9, 1, v0"); a("v_lshl_add_u32 v8, v9, 3, v8"); a("v_add_u32 v8, s75, v8")
    a("v_bfe_u32 v9, v1, 3, 1"); a("v_lshlrev_b32 v9, 1, v9"); a("v_and_b32 v7, 1, v2"); a("v_lshl_add_u32 v9, v7, 2, v9"); a("v_bfe_u32 v7, v0, 1, 1"); a("v_xor_b32 v9, v9, v7")
    for j in range(4): a(f"v_xor_b32 v7, {2*j}, v9"); a(f"v_lshl_add_u32 v{18+j}, v7, 4, v8")
    a("s_lshl_b32 s76, s68, 11"); a(f"s_add_u32 s76, s76, {EPX}")
def g2_dma(c,part):
    out=[]
    for q in range(4):
        if part&1: out.append(([f"s_mov_b32 s66, {q*57344+c*64}", f"s_add_u32 m0, s75, {(c&1)*8192+q*1024}", f"buffer_load_dwordx4 v10, {S4(HH)}, s66 offen{SC} lds"],("C",c)))
        if part&2: out.append(([f"s_mov_b32 s66, {(c*32+8*q)*1024}", f"s_add_u32 m0, s75, {(c&1)*8192+4096+q*1024}", f"buffer_load_dwordx4 v{12+(q&1)}, {S4(WD)}, s66 offen lds"],("C",c)))
    return out
def g2_pre(a,vq):
    for c in range(2):
        for g in g2_dma(c,2): emit_g(a,vq,g)
    for ti,(sr,sc) in enumerate(((X,""),(XN,SC))):
        for q in range(2):
            a(f"s_mov_b32 s66, {q*8192}"); a(f"s_add_u32 m0, s76, {ti*8192+q*1024}"); a(f"buffer_load_dwordx4 v14, {S4(sr)}, s66 offen{sc} lds"); vq.issue(("E",0))
    a("v_lshlrev_b32 v7, 3, v2"); a("v_add_u32 v7, s73, v7")
    for j in range(4): a(f"buffer_load_dwordx2 {R(24+2*j,2)}, v7, {S4(DSK)}, 0 offen offset:{32*j}"); vq.issue(("E",0))
def g2(a,vq,st_):
    for c in range(2):
        for g in g2_dma(c,1): emit_g(a,vq,g)
    ACC=lambda j,t: 64+16*j+4*t; HF=lambda t: 128+4*t; WF=lambda j: 144+4*j
    for i in range(64): a(f"v_mov_b32 v{64+i}, 0")
    NC=14
    for c in range(NC):
        if c==9:
            a("s_and_b32 s64, s2, 7"); a("s_lshl_b32 s64, s64, 10"); a("s_lshl_b32 s65, s71, 7"); a("s_add_u32 s64, s64, s65"); a(f"s_add_u32 s64, s64, {2*8192}")
            a("v_and_b32 v22, 31, v4"); a("v_lshlrev_b32 v22, 2, v22"); a("v_add_u32 v22, s64, v22"); poll_issue(a,vq,22,23,("PY",0))
        if c==12: poll_check(a,vq,22,23,("PY",0))
        vq.wait_for(a,lambda t:t==("C",c))
        if c==0: st_(a,"g2_loop")
        bo=(c&1)*8192
        for t in range(4):
            a(f"ds_read_b128 {R(HF(t))}, v16 offset:{bo+t*1024}")
            for h in range(2): a(f"ds_read_b64_tr_b16 {R(WF(t)+2*h,2)}, v{18+t} offset:{bo+4096+h*512}")
        a("s_waitcnt lgkmcnt(0)")
        dm=g2_dma(c+2,3) if c+2<NC else []
        if c==12:
            dm=[([f"s_mov_b32 s66, {q*32768}", f"s_add_u32 m0, s75, {q*1024}", f"buffer_load_dwordx4 v15, {S4(YT)}, s66 offen{SC} lds"],("E",0)) for q in range(2)]
        for j in range(4):
            for t in range(4):
                d=ACC(j,t); a(f"v_mfma_f32_16x16x32_bf16 {R(d)}, {R(WF(j))}, {R(HF(t))}, {R(d)}")
                if dm and t&1: emit_g(a,vq,dm.pop(0))
    st_(a,"g2_epi")
    a("v_lshlrev_b32 v7, 4, v4"); a("v_add_u32 v8, s75, v7")
    Ls=[lab("GR") for _ in range(4)]; Le=lab("GRE")
    for w in range(4):
        a(f"s_cmp_lg_u32 s68, {w}"); a(f"s_cbranch_scc1 {Ls[w]}")
        for t in range(4):
            if t==w: continue
            k=(t-w-1)%4
            for j in range(4): a(f"ds_write_b128 v8, {R(ACC(j,t))} offset:{2048+(k*4+j)*1024}")
        if w!=0:
            for j in range(4):
                for i in range(4): a(f"v_mov_b32 v{ACC(j,0)+i}, v{ACC(j,w)+i}")
        a(f"s_branch {Le}"); a(f"{Ls[w]}:")
    a(f"{Le}:")
    a("s_waitcnt lgkmcnt(0)"); vq.drain(a); a("s_barrier")
    for k in range(3):
        a(f"s_sub_u32 s66, s68, {k+1}"); a("s_and_b32 s66, s66, 3"); a("s_lshl_b32 s66, s66, 14"); a(f"v_add_u32 v9, s66, v7")
        for j in range(4): a(f"ds_read_b128 {R(160+16*k+4*j)}, v9 offset:{2048+(k*4+j)*1024}")
    a("v_lshlrev_b32 v5, 7, v1"); a("v_lshl_add_u32 v5, v2, 3, v5"); a("v_add_u32 v5, s76, v5")
    for j in range(4): a(f"ds_read_b64 {R(128+2*j,2)}, v5 offset:{32*j}"); a(f"ds_read_b64 {R(136+2*j,2)}, v5 offset:{8192+32*j}")
    a("v_lshrrev_b32 v6, 2, v1"); a("v_lshl_add_u32 v6, v2, 2, v6"); a("v_lshlrev_b32 v6, 7, v6"); a("v_and_b32 v9, 3, v0"); a("v_lshl_add_u32 v6, v9, 3, v6"); a("s_lshl_b32 s66, s68, 5"); a("v_add_u32 v6, s66, v6")
    for j in range(4): a(f"ds_read_b64_tr_b16 {R(144+2*j,2)}, v6 offset:{16384*j}")
    a("s_mov_b32 s67, 0xffff0000"); a("s_waitcnt lgkmcnt(0)")
    for j in range(4):
        for i in range(4):
            b=ACC(j,0)+i; p=160+4*j+i
            a(f"v_add_f32 v{b}, v{b}, v{p}"); a(f"v_add_f32 v{p+16}, v{p+16}, v{p+32}"); a(f"v_add_f32 v{b}, v{b}, v{p+16}")
        for p in range(2):
            b=ACC(j,0)+2*p; Xr=128+2*j+p; XNr=136+2*j+p; Y=144+2*j+p; D=24+2*j+p
            a(f"v_cvt_pk_bf16_f32 v210, v{b}, v{b+1}")
            a(f"v_lshlrev_b32 v211, 16, v{XNr}"); a(f"v_and_b32 v212, s67, v{XNr}"); a(f"v_lshlrev_b32 v213, 16, v{D}"); a(f"v_and_b32 v214, s67, v{D}")
            a("v_mul_f32 v211, v211, v213"); a("v_mul_f32 v212, v212, v214"); a("v_cvt_pk_bf16_f32 v211, v211, v212")
            for src in (Y,Xr):
                a("v_lshlrev_b32 v212, 16, v211"); a("v_and_b32 v211, s67, v211"); a(f"v_lshlrev_b32 v213, 16, v{src}"); a(f"v_and_b32 v214, s67, v{src}")
                a("v_add_f32 v212, v213, v212"); a("v_add_f32 v211, v214, v211"); a("v_cvt_pk_bf16_f32 v211, v212, v211")
            a("v_lshlrev_b32 v212, 16, v211"); a("v_and_b32 v211, s67, v211"); a("v_lshlrev_b32 v213, 16, v210"); a("v_and_b32 v214, s67, v210")
            a("v_add_f32 v212, v212, v213"); a("v_add_f32 v211, v211, v214"); a(f"v_cvt_pk_bf16_f32 v{152+2*j+p}, v212, v211")
        a(f"ds_write_b64 v5, {R(152+2*j,2)} offset:{32*j}")
    a("v_add_u32 v7, s76, v7"); a("s_waitcnt lgkmcnt(0)")
    a("ds_read_b128 v[64:67], v7"); a("ds_read_b128 v[68:71], v7 offset:1024"); a("s_movk_i32 s66, 0x2000"); a("s_waitcnt lgkmcnt(0)")
    a(f"buffer_store_dwordx4 v[64:67], v14, {S4(OUT)}, 0 offen"); a(f"buffer_store_dwordx4 v[68:71], v14, {S4(OUT)}, s66 offen")
def role_f(a,st):
    vq=VmQ(); PR=os.environ.get("PRIO","3"); a(f"s_setprio {PR[0]}")
    token_publish(a); f_p0(a,vq); g1_setup(a)
    m8.LNT=LNT; m8.p0_compute(a,vq); token_issue(a,vq); st(a,"p0_end")
    token_get(a,vq); signal(a,vq,0,("S",0)); st(a,"sig0")
    for s in range(NSTB):
        for g in bdma_l(s): emit_g(a,vq,g)
    xn_poll_addr(a,16); poll_issue(a,vq,16,20,("PX",0),4); poll_check(a,vq,16,20,("PX",0),4); st(a,"pc0")
    for c in range(NSTA):
        for g in adma_l(c): emit_g(a,vq,g)
    if len(PR)>1: a(f"s_setprio {PR[1]}")
    g1_main(a,vq,st); st(a,"g1_epi")
    if len(PR)>2: a(f"s_setprio {PR[2]}")
    g1_epilogue(a,vq)
    signal(a,vq,1,("S",1)); st(a,"sigH")
    g2_setup(a); g2_pre(a,vq)
    a("s_lshr_b32 s64, s70, 1")
    a("s_and_b32 s65, s64, 7"); a("s_lshl_b32 s65, s65, 3"); a("s_lshr_b32 s64, s64, 3"); a("s_add_u32 s64, s64, s65"); a("s_lshl_b32 s64, s64, 2")
    a("s_and_b32 s65, s2, 7"); a("s_lshl_b32 s65, s65, 10"); a("s_add_u32 s64, s64, s65"); a("s_add_u32 s64, s64, 8192")
    a("v_bfe_u32 v212, v4, 2, 2"); a("v_lshlrev_b32 v212, 8, v212"); a("v_and_b32 v210, 3, v4"); a("v_lshl_add_u32 v210, v210, 3, v212"); a("v_add_u32 v210, s64, v210")
    a("s_sleep 16"); poll_issue(a,vq,210,211,("PH",0)); poll_check(a,vq,210,211,("PH",0)); st(a,"g2_start")
    if len(PR)>3: a(f"s_setprio {PR[3]}")
    g2(a,vq,st); st(a,"end")
KR0=UB; KTAB=UB+4*KRB; XCH=KTAB
def s_warm(a):
    tile_ids(a)
    a("v_mul_u32_u24 v120, 0x5556, v0"); a("v_lshrrev_b32 v120, 16, v120"); a("v_mul_u32_u24 v121, 3, v120"); a("v_sub_u32 v121, v0, v121")
    a("s_and_b32 s64, s70, 7"); a("s_mul_i32 s64, s64, 52"); a("s_add_u32 s64, s64, 96")
    a("v_add_u32 v120, s64, v120"); a("v_mul_u32_u24 v120, 3584, v120"); a("v_mul_u32_u24 v121, 110, v121"); a("v_and_b32 v121, 0xfffffffc, v121")
    a("s_mul_i32 s64, s71, 224"); a("v_add3_u32 v120, v120, v121, s64")
    def body(): a(f"buffer_load_dword v124, v120, {S4(WG)}, 0 offen"); a(f"buffer_load_dword v125, v120, {S4(WU)}, 0 offen")
    masked(a,"v_cmp_gt_u32 vcc, 156, v0",body)
def s_warm_wd(a):
    a("s_lshr_b32 s64, s2, 6"); a("s_mul_i32 s64, s64, 448"); a("s_lshl_b32 s64, s64, 10")
    a("s_lshr_b32 s65, s2, 3"); a("s_and_b32 s65, s65, 7"); a("s_lshl_b32 s65, s65, 7"); a("s_add_u32 s64, s64, s65")
    a("v_lshlrev_b32 v121, 10, v0"); a("v_add_u32 v121, s64, v121"); a("s_mov_b32 s66, 0x40000")
    a(f"buffer_load_dword v250, v121, {S4(WD)}, 0 offen")
    masked(a,"v_cmp_gt_u32 vcc, 192, v0",lambda: a(f"buffer_load_dword v251, v121, {S4(WD)}, s66 offen"))
def s_loads(a,vq):
    srd(a,52,70,71,131072); srd(a,56,72,73,131072); srd(a,60,74,75,131072); srd(a,64,76,77,131072)
    a("v_lshrrev_b32 v7, 4, v0"); a("v_lshlrev_b32 v7, 4, v7"); a("s_lshl_b32 s3, s2, 9"); a("v_add_u32 v7, s3, v7")
    for dd in range(2):
        for k in range(4): a(f"buffer_load_dwordx4 {R(224+16*dd+4*k)}, v7, {S4(52+4*k)}, 0 offen offset:{256*dd}"); vq.issue(("P",dd))
    a("s_lshl_b32 s3, s2, 2"); a("s_load_dword s82, s[78:79], s3")
GI=100
def k_setup(a):
    a("v_lshlrev_b32 v5, 3, v1"); a("v_cvt_f32_u32 v24, v5")
    a("v_and_b32 v5, 7, v1"); a("v_lshrrev_b32 v6, 3, v1"); a("v_lshl_add_u32 v5, v6, 7, v5"); a("v_cvt_f32_u32 v25, v5")
    a("v_lshrrev_b32 v5, 2, v1"); a("v_lshlrev_b32 v5, 7, v5"); a("v_and_b32 v6, 3, v1"); a("v_lshl_add_u32 v5, v6, 1, v5"); a("v_add_u32 v5, 0x100, v5")
    a("v_subrev_u32 v6, 8, v1"); a("v_lshrrev_b32 v7, 1, v6"); a("v_lshlrev_b32 v7, 7, v7"); a("v_and_b32 v6, 1, v6"); a("v_lshl_add_u32 v7, v6, 2, v7"); a("v_add_u32 v7, 0x200, v7")
    a("v_cmp_gt_u32 vcc, 8, v1"); a("v_cndmask_b32 v5, v7, v5, vcc"); a("v_cvt_f32_u32 v26, v5")
    a("v_lshlrev_b32 v5, 7, v1"); a("v_add_u32 v5, 0x400, v5"); a("v_cvt_f32_u32 v27, v5")
    a("v_mul_u32_u24 v28, 3200, v3"); a(f"v_add_u32 v28, {KTAB}, v28")
    a("v_and_b32 v5, 1, v2"); a("v_lshlrev_b32 v5, 2, v5"); a("v_lshrrev_b32 v6, 1, v2"); a("v_lshl_add_u32 v5, v6, 7, v5"); a("v_lshl_add_u32 v29, v1, 3, v5")
    a("v_lshlrev_b32 v5, 6, v2"); a("v_lshl_add_u32 v6, v1, 2, v5"); a("v_add_u32 v6, 256, v6"); a("v_lshl_add_u32 v7, v1, 1, v5"); a("v_add_u32 v7, 256, v7")
    a("v_cmp_gt_u32 vcc, 2, v2"); a("v_cndmask_b32 v30, v7, v6, vcc")
    a("v_mov_b32 v6, 32"); a("v_cndmask_b32 v6, v6, 2, vcc"); a("v_add_u32 v31, v30, v6")
    a("v_add_u32 v6, v5, v1"); a("v_add_u32 v32, 512, v6")
    for k,(b,o) in enumerate([(29,0),(29,1),(29,2),(29,3),(30,0),(30,1),(31,0),(31,1),(32,0),(32,16),(32,32),(32,48)]):
        a(f"v_add_u32 v5, {o}, v{b}"); a("v_lshrrev_b32 v6, 5, v5"); a("v_add_u32 v5, v5, v6"); a(f"v_lshl_add_u32 v{50+k}, v5, 2, v28")
    a("v_lshlrev_b32 v5, 3, v0"); a("v_sub_u32 v5, 0x7ff, v5"); a("s_movk_i32 s67, 0xbd80"); a(f"s_mov_b32 s64, {KTAB}")
    for e in range(0,8,2):
        a(f"v_subrev_u32 v6, {e}, v5"); a(f"v_subrev_u32 v7, {e+1}, v5"); a("v_cvt_f32_u32 v72, v6"); a("v_cvt_f32_u32 v73, v7")
        a("v_cvt_pk_bf16_f32 v72, v72, v73"); a("v_lshrrev_b32 v73, 16, v72"); a("v_and_b32 v72, 0xffff, v72"); a("v_add_u32 v72, s67, v72"); a("v_add_u32 v73, s67, v73")
        a("v_cmp_gt_u32 vcc, 0x80, v6"); a("v_cndmask_b32 v72, v72, v6, vcc"); a("v_cmp_gt_u32 vcc, 0x80, v7"); a("v_cndmask_b32 v73, v73, v7, vcc")
        a("v_lshrrev_b32 v6, 5, v72"); a("v_add_u32 v72, v72, v6"); a("v_lshrrev_b32 v7, 5, v73"); a("v_add_u32 v73, v73, v7")
        a(f"v_lshl_add_u32 v{GI+e}, v72, 2, s64"); a(f"v_lshl_add_u32 v{GI+1+e}, v73, 2, s64")
    a("v_lshlrev_b32 v108, 4, v0"); a(f"v_add_u32 v108, {KR0}, v108")
def kgen(a,vq,dd,hooks={}):
    a("s_mov_b32 s77, 0x3fb8aa3b"); a("s_mov_b32 s78, 0xffff0000"); a("s_mov_b32 s79, 0x3e22f983")
    if dd==0: k_setup(a)
    for i in range(4): a(f"v_mov_b32 v{128+i}, 0")
    a("v_bfe_u32 v5, v0, 5, 1"); a(f"v_mul_u32_u24 v5, {KRB}, v5"); a("v_and_b32 v6, 31, v0"); a("v_lshl_add_u32 v5, v6, 4, v5"); a(f"v_add_u32 v5, {KR0+2*KRB*dd+4096}, v5")
    masked(a,"v_cmp_gt_u32 vcc, 64, v0",lambda: a("ds_write_b128 v5, v[128:131]"))
    a("s_waitcnt lgkmcnt(0)")
    a("s_lshl_b32 s3, s82, 16" if dd==0 else "s_and_b32 s3, s82, 0xffff0000")
    a("v_mov_b32 v33, s3"); a("v_mul_f32 v33, s77, v33"); a("v_exp_f32 v33, v33"); a("v_cvt_pk_bf16_f32 v33, v33, v33"); a("v_and_b32 v33, s78, v33"); a("v_add_f32 v34, v33, v33")
    A=38
    for i in range(12): a(f"v_mov_b32 v{A+i}, 0")
    def valu(n):
        P=208; q=n>>1; T=132+18*(n&3) if False else 132+22*(n&1)+0; D=33; o=[]
        T=120+22*(n&3) if False else [132,154,176,64][n&3]
        def unp(dst,src): o.append(f"v_and_b32 v{dst}, s78, v{src+q}" if n&1 else f"v_lshlrev_b32 v{dst}, 16, v{src+q}")
        unp(T,P); unp(T+1,P+4); unp(T+2,P+8); unp(T+3,P+12)
        o+=[f"v_mul_f32 v{T}, s77, v{T}", f"v_exp_f32 v{T}, v{T}", f"v_mul_f32 v{T+1}, v{T+1}, v{D}", f"v_mul_f32 v{T+2}, v{T+2}, v{D+1}",
            f"v_cvt_pk_bf16_f32 v{T}, v{T}, v{T}", f"v_and_b32 v{T}, s78, v{T}", f"v_mul_f32 v{T+3}, v{T+3}, v{D+1}", f"v_mul_f32 v{T}, v{T}, v{D}",
            f"v_mul_f32 v{T+1}, s79, v{T+1}", f"v_mul_f32 v{T}, s77, v{T}"]
        for k in range(4): o+=[f"v_mul_f32 v{T+4+k}, -v{T}, v{24+k}", f"v_mul_f32 v{T+8+k}, v{T+1}, v{24+k}"]
        for k in range(4): o+=[f"v_exp_f32 v{T+4+k}, v{T+4+k}", f"v_fract_f32 v{T+8+k}, v{T+8+k}"]
        for k in range(4): o+=[f"v_cos_f32 v{T+12+k}, v{T+8+k}", f"v_sin_f32 v{T+16+k}, v{T+8+k}"]
        for k in range(4): o+=[f"v_mul_f32 v{T+12+k}, v{T+12+k}, v{T+4+k}", f"v_mul_f32 v{T+16+k}, v{T+16+k}, v{T+4+k}"]
        o+=[f"v_mul_f32 v{T+20}, v{T+2}, v{T+12}", f"v_mul_f32 v{T+21}, v{T+2}, v{T+16}", f"v_fma_f32 v{T+20}, -v{T+3}, v{T+16}, v{T+20}", f"v_fma_f32 v{T+21}, v{T+3}, v{T+12}, v{T+21}", f"v_sub_f32 v{T+21}, 0, v{T+21}"]
        return o
    def mfmas(n):
        T=[132,154,176,64][n&3]
        return [f"v_mfma_f32_16x16x4_f32 {R(A+4*tau)}, v{T+13+4*part+tau}, v{T+20+part}, {R(A+4*tau)}" for part in range(2) for tau in range(3)]
    vq.wait_for(a,lambda t:t==("P",dd))
    for i in range(16): a(f"v_mov_b32 v{208+i}, v{224+16*dd+i}")
    pend=[]
    for n in range(0,8,2):
        if n in hooks: hooks[n]()
        o=[x for pr in zip(valu(n),valu(n+1)) for x in pr]
        for k,ins in enumerate(o):
            a(ins)
            if pend and k%8==4: a(pend.pop(0))
        while pend: a(pend.pop(0))
        pend=mfmas(n)+mfmas(n+1)
    while pend: a(pend.pop(0))
    for i in range(12): a(f"ds_write_b32 v{50+i}, v{A+i}")
    a("s_waitcnt lgkmcnt(0)"); a("s_barrier")
    B0=132
    for e in range(8):
        for w in range(4): a(f"ds_read_b32 v{B0+4*e+w}, v{GI+e} offset:{3200*w}")
    a("s_waitcnt lgkmcnt(0)")
    for e in range(8):
        b=B0+4*e; a(f"v_add_f32 v{b}, v{b}, v{b+1}"); a(f"v_add_f32 v{b+2}, v{b+2}, v{b+3}"); a(f"v_add_f32 v{b}, v{b}, v{b+2}")
    O=110
    for p in range(4):
        x0=B0+8*p; x1=x0+4
        a(f"v_cvt_pk_bf16_f32 v{O+p}, v{x0}, v{x1}"); a(f"v_lshlrev_b32 v{O+8}, 16, v{O+p}"); a(f"v_and_b32 v{O+9}, s78, v{O+p}")
        a(f"v_sub_f32 v{O+8}, v{x0}, v{O+8}"); a(f"v_sub_f32 v{O+9}, v{x1}, v{O+9}"); a(f"v_cvt_pk_bf16_f32 v{O+4+p}, v{O+8}, v{O+9}")
    a(f"ds_write_b128 v108, {R(O)} offset:{2*KRB*dd}"); a(f"ds_write_b128 v108, {R(O+4)} offset:{2*KRB*dd+KRB}")
    a("s_waitcnt lgkmcnt(0)"); a("s_barrier")
def conv_loads(a,vq,dd):
    a(f"s_mul_i32 s3, s2, {2*XNT_STRIDE}"); a(f"s_add_u32 s3, s3, {dd*XNT_STRIDE}")
    a("v_lshlrev_b32 v5, 4, v0"); a("v_add_u32 v6, s3, v5"); a("v_add_u32 v7, 4096, v6")
    def body():
        for q in range(5): a(f"buffer_load_dwordx4 {R(188+4*q)}, v7, {S4(XNT)}, 0 offen offset:{4*q}{SC}")
    masked(a,"v_cmp_gt_u32 vcc, 2, v0",body)
    for q in range(5): a(f"buffer_load_dwordx4 {R(168+4*q)}, v6, {S4(XNT)}, 0 offen offset:{4*q}{SC}"); vq.issue(("U",dd))
def conv(a,vq,dd,st_):
    a("v_lshlrev_b32 v5, 4, v0"); a("v_add_u32 v10, 4096, v5")
    def copies(base,vaddr):
        for s in range(8):
            q=s>>1
            if s&1:
                for k in range(4): a(f"v_alignbit_b32 v{16+4*q+k}, v{base+4*(q+1)+k}, v{base+4*q+k}, 16")
                src=16+4*q
            else: src=base+4*q
            a(f"ds_write_b128 v{vaddr}, {R(src)} offset:{s*CSTR+16*COFF[s]}")
    a("v_add_u32 v6, 1, v1"); a("v_and_b32 v7, 7, v6"); a(f"v_mul_u32_u24 v8, {CSTR}, v7")
    pk=sum(c<<(4*i) for i,c in enumerate(COFF)); a(f"s_mov_b32 s67, {pk}")
    a("v_lshlrev_b32 v9, 2, v7"); a("v_lshrrev_b32 v9, v9, s67"); a("v_and_b32 v9, 15, v9"); a("v_lshl_add_u32 v8, v9, 4, v8")
    a("v_and_b32 v6, 0x18, v6"); a("v_lshl_add_u32 v6, v2, 3, v6"); a("v_lshl_add_u32 v8, v6, 1, v8")
    a("s_lshl_b32 s64, s68, 7"); a("v_add_u32 v11, s64, v8")
    a("v_lshlrev_b32 v6, 5, v1"); a("v_lshlrev_b32 v7, 4, v2"); a("v_sub_u32 v6, v7, v6"); a(f"s_add_u32 s64, s64, {KR0+2*KRB*dd+2*2032-64*56}"); a("v_add_u32 v12, s64, v6")
    vq.wait_for(a,lambda t:t==("U",dd))
    copies(168,5); masked(a,"v_cmp_gt_u32 vcc, 2, v0",lambda: copies(188,10))
    ACB=208 if True else 0
    a("s_waitcnt lgkmcnt(0)"); a("s_barrier"); st_(a,f"cv{dd}")
    acc=lambda C: R(208+4*C)
    for i in range(32): a(f"v_mov_b32 v{208+i}, 0")
    RA=lambda st,i: R(16+96*st+4*i); RH=lambda st,i: R(48+96*st+4*i); RL=lambda st,i: R(80+96*st+4*i)
    def loads(st,b):
        out=[]
        for i in range(8): out+=[f"ds_read_b128 {RA(st,i)}, v11 offset:{512*i+64*b}", f"ds_read_b128 {RH(st,i)}, v12 offset:{64*(b-8*i+56)}", f"ds_read_b128 {RL(st,i)}, v12 offset:{64*(b-8*i+56)+KRB}"]
        return out
    for l in loads(0,0): a(l)
    for b in range(2):
        nxt=loads(1,1) if b==0 else []
        a("s_waitcnt lgkmcnt(0)"); k=0
        for C in range(8):
            for ap in range(C+1):
                m=C-ap
                a(f"v_mfma_f32_16x16x32_bf16 {acc(C)}, {RA(b,ap)}, {RH(b,m)}, {acc(C)}"); a(f"v_mfma_f32_16x16x32_bf16 {acc(C)}, {RA(b,ap)}, {RL(b,m)}, {acc(C)}")
                if nxt and k>=4: a(nxt.pop(0))
                k+=1
        while nxt: a(nxt.pop(0))
    a("v_lshlrev_b32 v5, 4, v4"); a("s_mul_i32 s64, s68, 6144"); a(f"s_add_u32 s64, s64, {XCH}"); a("v_add_u32 v6, s64, v5")
    Le=lab("CXE")
    for w in range(4):
        Lw=lab("CXW"); a(f"s_cmp_lg_u32 s68, {w}"); a(f"s_cbranch_scc1 {Lw}")
        for C in range(8):
            if C>>1==w: continue
            a(f"ds_write_b128 v6, {acc(C)} offset:{1024*((C-2*w-2)%8)}")
        for i in range(8): a(f"v_mov_b32 v{16+i}, v{208+8*w+i}")
        a(f"s_branch {Le}"); a(f"{Lw}:")
    a(f"{Le}:"); a("s_waitcnt lgkmcnt(0)"); a("s_barrier")
    for k in range(3):
        a(f"s_sub_u32 s64, s68, {k+1}"); a("s_and_b32 s64, s64, 3"); a("s_mul_i32 s64, s64, 6144"); a(f"s_add_u32 s64, s64, {XCH}"); a("v_add_u32 v7, s64, v5")
        for c in range(2): a(f"ds_read_b128 {R(24+8*k+4*c)}, v7 offset:{1024*(2*k+c)}")
    a("s_lshl_b32 s64, s68, 10"); a("v_lshlrev_b32 v8, 5, v1"); a("v_lshl_add_u32 v8, v2, 3, v8"); a("v_add_u32 v8, s64, v8"); a("v_add_u32 v9, s64, v5")
    a("s_lshl_b32 s3, s2, 13"); a(f"s_add_u32 s3, s3, {4096*dd}"); a("s_add_u32 s3, s3, s64"); a("v_add_u32 v10, s3, v5")
    a("s_waitcnt lgkmcnt(0)")
    for c in range(2):
        for k in range(4):
            b=16+4*c+k; a(f"v_add_f32 v{b}, v{b}, v{b+8}"); a(f"v_add_f32 v{b+16}, v{b+16}, v{b+24}"); a(f"v_add_f32 v{b}, v{b}, v{b+16}")
        a(f"v_cvt_pk_bf16_f32 v{48+2*c}, v{16+4*c}, v{17+4*c}"); a(f"v_cvt_pk_bf16_f32 v{49+2*c}, v{18+4*c}, v{19+4*c}")
        a(f"ds_write_b64 v8, {R(48+2*c,2)} offset:{512*c}")
    a("s_waitcnt lgkmcnt(0)"); a("ds_read_b128 v[52:55], v9"); a("s_waitcnt lgkmcnt(0)")
    a(f"buffer_store_dwordx4 v[52:55], v10, {S4(YT)}, 0 offen{SC}"); vq.issue(("S",2))
    a("s_barrier")
def role_s(a,st):
    vq=VmQ()
    s_loads(a,vq)
    SS=lambda i: a(f"s_memrealtime s[{84+2*i}:{85+2*i}]") if STAMPS else None
    SS(0); kgen(a,vq,0,{6:lambda:s_warm(a)}); SS(1)
    kgen(a,vq,1,{2:lambda:token_issue(a,vq)}); SS(2)
    token_get(a,vq); xn_poll_addr(a,16); poll_issue(a,vq,16,20,("PX",0),4); poll_check(a,vq,16,20,("PX",0),4); SS(3)
    conv_loads(a,vq,0); s_warm_wd(a); conv(a,vq,0,lambda a,n:None); SS(4)
    conv_loads(a,vq,1); conv(a,vq,1,lambda a,n:None); SS(5)
    signal(a,vq,2,("S",2)); SS(6)
    if STAMPS:
        a("s_load_dwordx2 s[4:5], s[0:1], 104"); a("s_waitcnt lgkmcnt(0) vmcnt(0)"); srd(a,52,4,5,1<<20,add=(48<<20)+65536)
        a("v_lshrrev_b32 v1, 6, v0"); a("s_lshl_b32 s3, s2, 8"); a("v_lshlrev_b32 v1, 6, v1"); a("v_add_u32 v1, s3, v1")
        for i in range(7): a(f"v_mov_b32 v2, s{84+2*i}"); a(f"buffer_store_dword v2, v1, s[52:55], 0 offen offset:{4*i}")
NAME=m8.NAME
def build():
    a=Asm(); st=St()
    a(f"{NAME}:"); a("s_cmp_ge_u32 s2, 512"); a("s_cbranch_scc1 K_END"); st(a,"start")
    setup(a)
    a("s_cmp_ge_u32 s81, 256"); a("s_cbranch_scc1 ROLE_S")
    role_f(a,st); st.dump(a); a("s_endpgm")
    a("ROLE_S:"); role_s(a,st)
    a("K_END:"); a("s_endpgm")
    return a.render()
if __name__=="__main__":
    HDR=open("parallel_sum__ssm_conv_s4d__swiglu_ffn__prompt.s.ref").read().split("; Override launch")[0]
    s=HDR+f"; @launch grid=(512,1,1) block=(256,1,1) lds={LDS}\n"+'.amdgcn_target "amdgcn-amd-amdhsa--gfx950"\n.text\n'+f".globl {NAME}\n.p2align 8\n.type {NAME},@function\n"+build()
    s+=f'''.section .rodata,"a"
.p2align 6
.amdhsa_kernel {NAME}
  .amdhsa_next_free_vgpr 256
  .amdhsa_next_free_sgpr 102
  .amdhsa_accum_offset 256
  .amdhsa_group_segment_fixed_size 0
  .amdhsa_kernarg_size 112
  .amdhsa_user_sgpr_count 2
  .amdhsa_user_sgpr_kernarg_segment_ptr 1
  .amdhsa_system_sgpr_workgroup_id_x 1
.end_amdhsa_kernel
'''
    open(sys.argv[1],"w").write(s)
```

```python
import os, sys
from asmlib import Asm
import m8
from m8 import VmQ, srd, R, S4, lab, masked, emit_g, X,XN,XNT,HH,YT,WG,WU,WD,OUT,DSK,DBG,FL, WS_XNT,WS_YT,WS_H,WS_FL,XNT_STRIDE,XNT_SIZE,GSTR,MATB,STG,KRB,COFF,CSTR,UB,PHI,SC
STAMPS=m8.STAMPS; SKIP=m8.SKIP
LDS=81920
NSTB=3; ARING=NSTB*STG; ASLOT=16384; NSTA=2; LNT=ARING+ASLOT
class St(m8.St):
    def dump(s,a):
        if not STAMPS: return
        a("s_load_dwordx2 s[4:5], s[0:1], 104"); a("s_waitcnt lgkmcnt(0) vmcnt(0)")
        srd(a,52,4,5,1<<20,add=(48<<20))
        a("v_lshrrev_b32 v1, 6, v0"); a("s_lshl_b32 s3, s2, 8"); a("v_lshlrev_b32 v1, 6, v1"); a("v_add_u32 v1, s3, v1")
        for i in range(s.n): a(f"v_mov_b32 v2, s{84+2*i}"); a(f"buffer_store_dword v2, v1, s[52:55], 0 offen offset:{4*i}")
        print("stamps:",s.names)
def setup(a):
    a("s_load_dwordx16 s[68:83], s[0:1], 0"); a("s_load_dwordx8 s[52:59], s[0:1], 64"); a("s_load_dwordx4 s[60:63], s[0:1], 96")
    a("v_and_b32 v1, 15, v0"); a("v_bfe_u32 v2, v0, 4, 2"); a("v_lshrrev_b32 v3, 6, v0"); a("v_and_b32 v4, 63, v0")
    a("s_waitcnt lgkmcnt(0)")
    srd(a,X,68,69,2<<20); srd(a,XN,62,63,2<<20); srd(a,XNT,62,63,XNT_SIZE,add=WS_XNT); srd(a,HH,62,63,2048*3584,add=WS_H)
    srd(a,YT,62,63,2<<20,add=WS_YT); srd(a,WG,52,53,512*3584); srd(a,WU,54,55,512*3584); srd(a,WD,56,57,1792*1024)
    srd(a,OUT,58,59,2<<20); srd(a,DSK,80,81,1024); srd(a,DBG,60,61,256); srd(a,FL,62,63,32768,add=WS_FL)
    a("v_readfirstlane_b32 s68, v3"); a("s_mov_b32 s81, s2"); a("s_and_b32 s2, s2, 255")
token_publish=m8.token_publish; token_issue=m8.token_issue; token_get=m8.token_get; poll_issue=m8.poll_issue; poll_check=m8.poll_check
def signal(a,vq,phase,tag,t=5):
    vq.wait_for(a,lambda x:x==tag); a("s_barrier")
    a(f"v_mov_b32 v{t}, s83"); a("s_lshl_b32 s64, s2, 2"); a(f"s_add_u32 s64, s64, {phase*8192}"); a(f"v_lshlrev_b32 v{t+1}, 10, v0"); a(f"v_add_u32 v{t+1}, s64, v{t+1}")
    masked(a,"v_cmp_gt_u32 vcc, 8, v0",lambda: a(f"buffer_store_dword v{t}, v{t+1}, {S4(FL)}, 0 offen sc1"))
def xn_poll_addr(a,v): a("s_and_b32 s64, s2, 7"); a("s_lshl_b32 s64, s64, 10"); a(f"v_lshlrev_b32 v{v}, 4, v4"); a(f"v_add_u32 v{v}, s64, v{v}")
def tile_ids(a):
    a("s_and_b32 s64, s2, 7"); a("s_lshr_b32 s65, s2, 3")
    a("s_and_b32 s70, s64, 1"); a("s_lshl_b32 s70, s70, 3"); a("s_and_b32 s66, s65, 7"); a("s_add_u32 s70, s70, s66")
    a("s_lshr_b32 s71, s64, 1"); a("s_lshl_b32 s71, s71, 2"); a("s_lshr_b32 s66, s65, 3"); a("s_add_u32 s71, s71, s66")
def f_p0(a,vq):
    m8.LNT=LNT
    m8.p0_addr(a); m8.p0_loads(a,vq)
def g1_setup(a):
    tile_ids(a)
    a("v_mul_u32_u24 v8, 0x2493, v4"); a("v_lshrrev_b32 v8, 17, v8"); a("v_mul_u32_u24 v9, 14, v8"); a("v_sub_u32 v9, v4, v9")
    a("v_mul_u32_u24 v8, 3584, v8"); a("v_lshl_add_u32 v8, v9, 4, v8"); a("s_mul_i32 s66, s71, 224"); a("v_add_u32 v10, s66, v8")
    a("s_mul_i32 s72, s68, 28672"); a(f"s_mul_i32 s73, s68, {2*GSTR}")
    a(f"v_mul_u32_u24 v5, {2*GSTR}, v2"); a("v_lshrrev_b32 v6, 2, v1"); a("v_mul_u32_u24 v6, 224, v6"); a("v_and_b32 v7, 3, v0"); a("v_lshl_add_u32 v6, v7, 3, v6"); a("v_add_u32 v11, v5, v6")
    a("v_lshrrev_b32 v5, 3, v4"); a("v_and_b32 v6, 7, v4"); a("s_lshl_b32 s66, s70, 7"); a("s_lshl_b32 s67, s68, 5"); a("s_add_u32 s66, s66, s67")
    a("v_add_u32 v7, s66, v5"); a("v_lshlrev_b32 v7, 10, v7"); a("v_xor_b32 v8, v6, v2"); a("v_lshl_add_u32 v12, v8, 4, v7"); a("v_xor_b32 v8, 4, v8"); a("v_lshl_add_u32 v13, v8, 4, v7")
    a("s_lshl_b32 s74, s68, 12"); a(f"s_add_u32 s74, s74, {ARING}")
    a("v_lshrrev_b32 v7, 1, v1"); a("v_xor_b32 v8, v2, v7"); a("v_lshlrev_b32 v9, 7, v1"); a("v_add_u32 v9, s74, v9")
    a("v_lshl_add_u32 v14, v8, 4, v9"); a("v_xor_b32 v8, 4, v8"); a("v_lshl_add_u32 v15, v8, 4, v9")
def bdma_l(s):
    return [([f"s_add_u32 s66, s72, {s*114688+gi*14336}", f"s_add_u32 m0, s73, {(s%NSTB)*STG+mat*MATB+gi*GSTR}", "s_mov_b32 exec_hi, 0x00ffffff",
              f"buffer_load_dwordx4 v10, {S4((WG,WU)[mat])}, s66 offen lds", "s_mov_b32 exec_hi, -1"],("B",s)) for mat in range(2) for gi in range(2)]
def adma_l(c):
    return [([f"s_mov_b32 s66, {q*8192+c*128}", f"s_add_u32 m0, s74, {(c%NSTA)*ASLOT+q*1024}", f"buffer_load_dwordx4 v{12+(q&1)}, {S4(XN)}, s66 offen{SC} lds"],("A",c)) for q in range(4)]
BF=lambda st,mat,j: 16+56*st+28*mat+4*j
AC=lambda rt,mat,j: 128+56*rt+28*mat+4*j
AF=lambda st,rt: 240+8*st+4*rt
def g1_reads(s):
    st=s&1; out=[f"ds_read_b128 {R(AF(st,rt))}, v{14+(s&1)} offset:{((s>>1)%NSTA)*ASLOT+rt*2048}" for rt in range(2)]
    for j in range(7):
        for mat in range(2):
            for h in range(2): out.append(f"ds_read_b64_tr_b16 {R(BF(st,mat,j)+2*h,2)}, v11 offset:{(s%NSTB)*STG+mat*MATB+h*GSTR+32*j}")
    return out
def g1_main(a,vq,st_):
    for i in range(112): a(f"v_mov_b32 v{128+i}, 0")
    vq.wait_for(a,lambda t:t in(("B",0),("A",0))); a("s_barrier"); st_(a,"g1_loop")
    for l in g1_reads(0): a(l)
    for s in range(16):
        st=s&1
        if s==8: st_(a,"g1_s8")
        vq.wait_for(a,lambda t:t==("B",s+1) or t==("A",(s+1)>>1)); a("s_waitcnt lgkmcnt(0)"); a("s_barrier")
        dm=[]
        if s&1 and (s>>1)+NSTA<8: dm+=adma_l((s>>1)+NSTA)
        if s+NSTB<16: dm+=bdma_l(s+NSTB)
        nxt=g1_reads(s+1) if s<15 else []; k=0
        for j in range(7):
            for mat in range(2):
                for rt in range(2):
                    d=AC(rt,mat,j)
                    a(f"v_mfma_f32_16x16x32_bf16 {R(d)}, {R(BF(st,mat,j))}, {R(AF(st,rt))}, {R(d)}")
                    if nxt: a(nxt.pop(0))
                    if nxt and j==0: a(nxt.pop(0))
                    if dm and k%3==1: emit_g(a,vq,dm.pop(0))
                    k+=1
        while dm: emit_g(a,vq,dm.pop(0))
def g1_epilogue(a,vq):
    a("s_mov_b32 s66, 0xffff0000"); a("s_mov_b32 s67, 0xbfb8aa3b")
    a("v_mul_u32_u24 v5, 240, v1"); a("v_lshl_add_u32 v5, v2, 3, v5"); a("v_add_u32 v5, s74, v5")
    a("s_lshl_b32 s64, s70, 7"); a("s_lshl_b32 s65, s68, 5"); a("s_add_u32 s64, s64, s65"); a("s_mul_i32 s64, s64, 3584"); a("s_mul_i32 s65, s71, 224"); a("s_add_u32 s75, s64, s65"); a("s_add_u32 s76, s75, 57344")
    for i in range(4):
        a(f"v_add_u32 v6, {64*i}, v4"); a("v_mul_u32_u24 v7, 0x2493, v6"); a("v_lshrrev_b32 v7, 17, v7"); a("v_mul_u32_u24 v9, 14, v7"); a("v_sub_u32 v9, v6, v9")
        a("v_mul_u32_u24 v6, 3584, v7"); a(f"v_lshl_add_u32 v{104+i}, v9, 4, v6")
        a("v_mul_u32_u24 v6, 240, v7"); a("v_lshl_add_u32 v6, v9, 4, v6"); a(f"v_add_u32 v{108+i}, s74, v6")
    for rt in range(2):
        for j in range(7):
            g=AC(rt,0,j); u=AC(rt,1,j); T=16+16*(j&1)
            a(f"v_cvt_pk_bf16_f32 v{T}, v{g}, v{g+1}"); a(f"v_cvt_pk_bf16_f32 v{T+1}, v{g+2}, v{g+3}")
            a(f"v_lshlrev_b32 v{T+2}, 16, v{T}"); a(f"v_and_b32 v{T+3}, s66, v{T}"); a(f"v_lshlrev_b32 v{T+4}, 16, v{T+1}"); a(f"v_and_b32 v{T+5}, s66, v{T+1}")
            for k in range(4): a(f"v_mul_f32 v{T+6+k}, s67, v{T+2+k}")
            for k in range(4): a(f"v_exp_f32 v{T+6+k}, v{T+6+k}")
            a(f"v_cvt_pk_bf16_f32 v{T}, v{u}, v{u+1}"); a(f"v_cvt_pk_bf16_f32 v{T+1}, v{u+2}, v{u+3}")
            a(f"v_lshlrev_b32 v{T+10}, 16, v{T}"); a(f"v_and_b32 v{T+11}, s66, v{T}"); a(f"v_lshlrev_b32 v{T+12}, 16, v{T+1}"); a(f"v_and_b32 v{T+13}, s66, v{T+1}")
            for k in range(4): a(f"v_add_f32 v{T+6+k}, 1.0, v{T+6+k}")
            for k in range(4): a(f"v_rcp_f32 v{T+6+k}, v{T+6+k}")
            for k in range(4): a(f"v_mul_f32 v{T+2+k}, v{T+2+k}, v{T+6+k}")
            a(f"v_cvt_pk_bf16_f32 v{T}, v{T+2}, v{T+3}"); a(f"v_cvt_pk_bf16_f32 v{T+1}, v{T+4}, v{T+5}")
            a(f"v_lshlrev_b32 v{T+2}, 16, v{T}"); a(f"v_and_b32 v{T+3}, s66, v{T}"); a(f"v_lshlrev_b32 v{T+4}, 16, v{T+1}"); a(f"v_and_b32 v{T+5}, s66, v{T+1}")
            for k in range(4): a(f"v_mul_f32 v{T+2+k}, v{T+2+k}, v{T+10+k}")
            a(f"v_cvt_pk_bf16_f32 v{T+14}, v{T+2}, v{T+3}"); a(f"v_cvt_pk_bf16_f32 v{T+15}, v{T+4}, v{T+5}")
            a(f"ds_write_b64 v5, {R(T+14,2)} offset:{rt*ASLOT+32*j}")
        a("s_waitcnt lgkmcnt(0)")
        for q in range(4):
            if q==3: a("s_mov_b32 exec_hi, 0")
            a(f"ds_read_b128 {R(112+4*q)}, v{108+q} offset:{rt*ASLOT}")
        a("s_mov_b32 exec_hi, -1")
        for q in range(4):
            a(f"s_waitcnt lgkmcnt({3-q})")
            if q==3: a("s_mov_b32 exec_hi, 0")
            a(f"buffer_store_dwordx4 {R(112+4*q)}, v{104+q}, {S4(HH)}, s{75+rt} offen{SC}"); vq.issue(("S",1))
        a("s_mov_b32 exec_hi, -1")
WB=16384; EPX=65536
def g2_setup(a):
    a("s_and_b32 s64, s2, 7"); a("s_lshr_b32 s65, s2, 3"); a("s_lshl_b32 s70, s64, 2"); a("s_lshr_b32 s66, s65, 3"); a("s_add_u32 s70, s70, s66"); a("s_and_b32 s71, s65, 7")
    a("s_lshl_b32 s72, s70, 6"); a("s_lshl_b32 s73, s71, 7"); a(f"s_mul_i32 s75, s68, {WB}")
    pk=sum(c<<(2*i) for i,c in enumerate(PHI)); a(f"s_mov_b32 s67, {pk}")
    a("v_lshrrev_b32 v5, 2, v4"); a("v_add_u32 v5, s72, v5"); a("v_mul_u32_u24 v5, 3584, v5"); a("s_mul_i32 s66, s68, 896"); a("v_add_u32 v5, s66, v5")
    a("v_lshlrev_b32 v6, 1, v2"); a("v_lshrrev_b32 v6, v6, s67"); a("v_and_b32 v6, 3, v6"); a("v_and_b32 v7, 3, v4"); a("v_xor_b32 v6, v6, v7"); a("v_lshl_add_u32 v10, v6, 4, v5")
    a("v_lshrrev_b32 v5, 3, v4"); a("v_and_b32 v6, 7, v4"); a("s_mul_i32 s66, s68, 448"); a("v_add_u32 v7, s66, v5"); a("v_lshlrev_b32 v7, 10, v7"); a("v_add_u32 v7, s73, v7")
    a("v_and_b32 v8, 1, v2"); a("v_lshlrev_b32 v8, 1, v8"); a("v_xor_b32 v8, v6, v8"); a("v_lshl_add_u32 v12, v8, 4, v7"); a("v_xor_b32 v8, 4, v8"); a("v_lshl_add_u32 v13, v8, 4, v7")
    a("s_lshl_b32 s74, s68, 4"); a("s_add_u32 s66, s72, s74"); a("v_add_u32 v7, s66, v5"); a("v_lshlrev_b32 v7, 10, v7"); a("v_lshl_add_u32 v7, v6, 4, v7"); a("v_add_u32 v14, s73, v7")
    a("s_lshl_b32 s66, s71, 6"); a("s_add_u32 s66, s66, s74"); a("v_add_u32 v7, s66, v5"); a("v_lshlrev_b32 v7, 12, v7"); a("v_lshl_add_u32 v7, v6, 4, v7"); a("s_lshl_b32 s66, s72, 1"); a("v_add_u32 v15, s66, v7")
    a("v_lshrrev_b32 v6, 2, v1"); a("v_lshlrev_b32 v6, 1, v6"); a("v_lshrrev_b32 v6, v6, s67"); a("v_and_b32 v6, 3, v6"); a("v_xor_b32 v6, v6, v2"); a("v_lshlrev_b32 v7, 6, v1"); a("v_lshl_add_u32 v16, v6, 4, v7"); a("v_add_u32 v16, s75, v16")
    a("v_lshrrev_b32 v7, 2, v1"); a("v_lshl_add_u32 v8, v2, 3, v7"); a("v_lshlrev_b32 v8, 7, v8"); a("v_and_b32 v9, 1, v0"); a("v_lshl_add_u32 v8, v9, 3, v8"); a("v_add_u32 v8, s75, v8")
    a("v_bfe_u32 v9, v1, 3, 1"); a("v_lshlrev_b32 v9, 1, v9"); a("v_and_b32 v7, 1, v2"); a("v_lshl_add_u32 v9, v7, 2, v9"); a("v_bfe_u32 v7, v0, 1, 1"); a("v_xor_b32 v9, v9, v7")
    for j in range(4): a(f"v_xor_b32 v7, {2*j}, v9"); a(f"v_lshl_add_u32 v{18+j}, v7, 4, v8")
    a("s_lshl_b32 s76, s68, 11"); a(f"s_add_u32 s76, s76, {EPX}")
def g2_dma(c,part):
    out=[]
    for q in range(4):
        if part&1: out.append(([f"s_mov_b32 s66, {q*57344+c*64}", f"s_add_u32 m0, s75, {(c&1)*8192+q*1024}", f"buffer_load_dwordx4 v10, {S4(HH)}, s66 offen{SC} lds"],("C",c)))
        if part&2: out.append(([f"s_mov_b32 s66, {(c*32+8*q)*1024}", f"s_add_u32 m0, s75, {(c&1)*8192+4096+q*1024}", f"buffer_load_dwordx4 v{12+(q&1)}, {S4(WD)}, s66 offen lds"],("C",c)))
    return out
def g2_pre(a,vq):
    for c in range(2):
        for g in g2_dma(c,2): emit_g(a,vq,g)
    for ti,(sr,sc) in enumerate(((X,""),(XN,SC))):
        for q in range(2):
            a(f"s_mov_b32 s66, {q*8192}"); a(f"s_add_u32 m0, s76, {ti*8192+q*1024}"); a(f"buffer_load_dwordx4 v14, {S4(sr)}, s66 offen{sc} lds"); vq.issue(("E",0))
    a("v_lshlrev_b32 v7, 3, v2"); a("v_add_u32 v7, s73, v7")
    for j in range(4): a(f"buffer_load_dwordx2 {R(24+2*j,2)}, v7, {S4(DSK)}, 0 offen offset:{32*j}"); vq.issue(("E",0))
def g2(a,vq,st_):
    for c in range(2):
        for g in g2_dma(c,1): emit_g(a,vq,g)
    ACC=lambda j,t: 64+16*j+4*t; HF=lambda t: 128+4*t; WF=lambda j: 144+4*j
    for i in range(64): a(f"v_mov_b32 v{64+i}, 0")
    NC=14
    for c in range(NC):
        if c==9:
            a("s_and_b32 s64, s2, 7"); a("s_lshl_b32 s64, s64, 10"); a("s_lshl_b32 s65, s71, 7"); a("s_add_u32 s64, s64, s65"); a(f"s_add_u32 s64, s64, {2*8192}")
            a("v_and_b32 v22, 31, v4"); a("v_lshlrev_b32 v22, 2, v22"); a("v_add_u32 v22, s64, v22"); poll_issue(a,vq,22,23,("PY",0))
        if c==12: poll_check(a,vq,22,23,("PY",0))
        vq.wait_for(a,lambda t:t==("C",c))
        if c==0: st_(a,"g2_loop")
        bo=(c&1)*8192
        for t in range(4):
            a(f"ds_read_b128 {R(HF(t))}, v16 offset:{bo+t*1024}")
            for h in range(2): a(f"ds_read_b64_tr_b16 {R(WF(t)+2*h,2)}, v{18+t} offset:{bo+4096+h*512}")
        a("s_waitcnt lgkmcnt(0)")
        dm=g2_dma(c+2,3) if c+2<NC else []
        if c==12:
            dm=[([f"s_mov_b32 s66, {q*32768}", f"s_add_u32 m0, s75, {q*1024}", f"buffer_load_dwordx4 v15, {S4(YT)}, s66 offen{SC} lds"],("E",0)) for q in range(2)]
        for j in range(4):
            for t in range(4):
                d=ACC(j,t); a(f"v_mfma_f32_16x16x32_bf16 {R(d)}, {R(WF(j))}, {R(HF(t))}, {R(d)}")
                if dm and t&1: emit_g(a,vq,dm.pop(0))
    st_(a,"g2_epi")
    a("v_lshlrev_b32 v7, 4, v4"); a("v_add_u32 v8, s75, v7")
    Ls=[lab("GR") for _ in range(4)]; Le=lab("GRE"); a("s_nop 7")
    for w in range(4):
        a(f"s_cmp_lg_u32 s68, {w}"); a(f"s_cbranch_scc1 {Ls[w]}")
        for t in range(4):
            if t==w: continue
            k=(t-w-1)%4
            for j in range(4): a(f"ds_write_b128 v8, {R(ACC(j,t))} offset:{2048+(k*4+j)*1024}")
        if w!=0:
            for j in range(4):
                for i in range(4): a(f"v_mov_b32 v{ACC(j,0)+i}, v{ACC(j,w)+i}")
        a(f"s_branch {Le}"); a(f"{Ls[w]}:")
    a(f"{Le}:")
    a("s_waitcnt lgkmcnt(0)"); vq.drain(a); a("s_barrier")
    for k in range(3):
        a(f"s_sub_u32 s66, s68, {k+1}"); a("s_and_b32 s66, s66, 3"); a("s_lshl_b32 s66, s66, 14"); a(f"v_add_u32 v9, s66, v7")
        for j in range(4): a(f"ds_read_b128 {R(160+16*k+4*j)}, v9 offset:{2048+(k*4+j)*1024}")
    a("v_lshlrev_b32 v5, 7, v1"); a("v_lshl_add_u32 v5, v2, 3, v5"); a("v_add_u32 v5, s76, v5")
    for j in range(4): a(f"ds_read_b64 {R(128+2*j,2)}, v5 offset:{32*j}"); a(f"ds_read_b64 {R(136+2*j,2)}, v5 offset:{8192+32*j}")
    a("v_lshrrev_b32 v6, 2, v1"); a("v_lshl_add_u32 v6, v2, 2, v6"); a("v_lshlrev_b32 v6, 7, v6"); a("v_and_b32 v9, 3, v0"); a("v_lshl_add_u32 v6, v9, 3, v6"); a("s_lshl_b32 s66, s68, 5"); a("v_add_u32 v6, s66, v6")
    for j in range(4): a(f"ds_read_b64_tr_b16 {R(144+2*j,2)}, v6 offset:{16384*j}")
    a("s_mov_b32 s67, 0xffff0000"); a("s_waitcnt lgkmcnt(0)")
    for j in range(4):
        for i in range(4):
            b=ACC(j,0)+i; p=160+4*j+i
            a(f"v_add_f32 v{b}, v{b}, v{p}"); a(f"v_add_f32 v{p+16}, v{p+16}, v{p+32}"); a(f"v_add_f32 v{b}, v{b}, v{p+16}")
        for p in range(2):
            b=ACC(j,0)+2*p; Xr=128+2*j+p; XNr=136+2*j+p; Y=144+2*j+p; D=24+2*j+p
            a(f"v_cvt_pk_bf16_f32 v210, v{b}, v{b+1}")
            a(f"v_lshlrev_b32 v211, 16, v{XNr}"); a(f"v_and_b32 v212, s67, v{XNr}"); a(f"v_lshlrev_b32 v213, 16, v{D}"); a(f"v_and_b32 v214, s67, v{D}")
            a("v_mul_f32 v211, v211, v213"); a("v_mul_f32 v212, v212, v214"); a("v_cvt_pk_bf16_f32 v211, v211, v212")
            for src in (Y,Xr):
                a("v_lshlrev_b32 v212, 16, v211"); a("v_and_b32 v211, s67, v211"); a(f"v_lshlrev_b32 v213, 16, v{src}"); a(f"v_and_b32 v214, s67, v{src}")
                a("v_add_f32 v212, v213, v212"); a("v_add_f32 v211, v214, v211"); a("v_cvt_pk_bf16_f32 v211, v212, v211")
            a("v_lshlrev_b32 v212, 16, v211"); a("v_and_b32 v211, s67, v211"); a("v_lshlrev_b32 v213, 16, v210"); a("v_and_b32 v214, s67, v210")
            a("v_add_f32 v212, v212, v213"); a("v_add_f32 v211, v211, v214"); a(f"v_cvt_pk_bf16_f32 v{152+2*j+p}, v212, v211")
        a(f"ds_write_b64 v5, {R(152+2*j,2)} offset:{32*j}")
    a("v_add_u32 v7, s76, v7"); a("s_waitcnt lgkmcnt(0)")
    a("ds_read_b128 v[64:67], v7"); a("ds_read_b128 v[68:71], v7 offset:1024"); a("s_movk_i32 s66, 0x2000"); a("s_waitcnt lgkmcnt(0)")
    a(f"buffer_store_dwordx4 v[64:67], v14, {S4(OUT)}, 0 offen"); a(f"buffer_store_dwordx4 v[68:71], v14, {S4(OUT)}, s66 offen")
def role_f(a,st):
    vq=VmQ(); PR=os.environ.get("PRIO","3"); a(f"s_setprio {PR[0]}")
    token_publish(a); f_p0(a,vq); g1_setup(a)
    m8.LNT=LNT; m8.p0_compute(a,vq); token_issue(a,vq); st(a,"p0_end")
    token_get(a,vq); signal(a,vq,0,("S",0)); st(a,"sig0")
    for s in range(NSTB):
        for g in bdma_l(s): emit_g(a,vq,g)
    xn_poll_addr(a,16); poll_issue(a,vq,16,20,("PX",0),4); poll_check(a,vq,16,20,("PX",0),4); st(a,"pc0")
    for c in range(NSTA):
        for g in adma_l(c): emit_g(a,vq,g)
    if len(PR)>1: a(f"s_setprio {PR[1]}")
    g1_main(a,vq,st); st(a,"g1_epi")
    if len(PR)>2: a(f"s_setprio {PR[2]}")
    g1_epilogue(a,vq)
    signal(a,vq,1,("S",1)); st(a,"sigH")
    g2_setup(a); g2_pre(a,vq)
    a("s_lshr_b32 s64, s70, 1")
    a("s_and_b32 s65, s64, 7"); a("s_lshl_b32 s65, s65, 3"); a("s_lshr_b32 s64, s64, 3"); a("s_add_u32 s64, s64, s65"); a("s_lshl_b32 s64, s64, 2")
    a("s_and_b32 s65, s2, 7"); a("s_lshl_b32 s65, s65, 10"); a("s_add_u32 s64, s64, s65"); a("s_add_u32 s64, s64, 8192")
    a("v_bfe_u32 v212, v4, 2, 2"); a("v_lshlrev_b32 v212, 8, v212"); a("v_and_b32 v210, 3, v4"); a("v_lshl_add_u32 v210, v210, 3, v212"); a("v_add_u32 v210, s64, v210")
    a("s_sleep 16"); poll_issue(a,vq,210,211,("PH",0)); poll_check(a,vq,210,211,("PH",0)); st(a,"g2_start")
    if len(PR)>3: a(f"s_setprio {PR[3]}")
    g2(a,vq,st); st(a,"end")
KR0=UB; KTAB=UB+4*KRB; XCH=KTAB
def s_warm(a):
    tile_ids(a)
    a("v_mul_u32_u24 v120, 0x5556, v0"); a("v_lshrrev_b32 v120, 16, v120"); a("v_mul_u32_u24 v121, 3, v120"); a("v_sub_u32 v121, v0, v121")
    a("s_and_b32 s64, s70, 7"); a("s_mul_i32 s64, s64, 52"); a("s_add_u32 s64, s64, 96")
    a("v_add_u32 v120, s64, v120"); a("v_mul_u32_u24 v120, 3584, v120"); a("v_mul_u32_u24 v121, 110, v121"); a("v_and_b32 v121, 0xfffffffc, v121")
    a("s_mul_i32 s64, s71, 224"); a("v_add3_u32 v120, v120, v121, s64")
    def body(): a(f"buffer_load_dword v124, v120, {S4(WG)}, 0 offen"); a(f"buffer_load_dword v125, v120, {S4(WU)}, 0 offen")
    masked(a,"v_cmp_gt_u32 vcc, 156, v0",body)
def s_warm_wd(a):
    a("s_lshr_b32 s64, s2, 6"); a("s_mul_i32 s64, s64, 448"); a("s_lshl_b32 s64, s64, 10")
    a("s_lshr_b32 s65, s2, 3"); a("s_and_b32 s65, s65, 7"); a("s_lshl_b32 s65, s65, 7"); a("s_add_u32 s64, s64, s65")
    a("v_lshlrev_b32 v121, 10, v0"); a("v_add_u32 v121, s64, v121"); a("s_mov_b32 s66, 0x40000")
    a(f"buffer_load_dword v13, v121, {S4(WD)}, 0 offen")
    masked(a,"v_cmp_gt_u32 vcc, 192, v0",lambda: a(f"buffer_load_dword v14, v121, {S4(WD)}, s66 offen"))
def s_loads(a,vq):
    srd(a,52,70,71,131072); srd(a,56,72,73,131072); srd(a,60,74,75,131072); srd(a,64,76,77,131072)
    a("v_lshrrev_b32 v7, 4, v0"); a("v_lshlrev_b32 v7, 4, v7"); a("s_lshl_b32 s3, s2, 9"); a("v_add_u32 v7, s3, v7")
    for dd in range(2):
        for k in range(4): a(f"buffer_load_dwordx4 {R(224+16*dd+4*k)}, v7, {S4(52+4*k)}, 0 offen offset:{256*dd}"); vq.issue(("P",dd))
    a("s_lshl_b32 s3, s2, 2"); a("s_load_dword s82, s[78:79], s3")
GI=100
def k_setup(a):
    a("v_lshlrev_b32 v5, 3, v1"); a("v_cvt_f32_u32 v24, v5")
    a("v_and_b32 v5, 7, v1"); a("v_lshrrev_b32 v6, 3, v1"); a("v_lshl_add_u32 v5, v6, 7, v5"); a("v_cvt_f32_u32 v25, v5")
    a("v_lshrrev_b32 v5, 2, v1"); a("v_lshlrev_b32 v5, 7, v5"); a("v_and_b32 v6, 3, v1"); a("v_lshl_add_u32 v5, v6, 1, v5"); a("v_add_u32 v5, 0x100, v5")
    a("v_subrev_u32 v6, 8, v1"); a("v_lshrrev_b32 v7, 1, v6"); a("v_lshlrev_b32 v7, 7, v7"); a("v_and_b32 v6, 1, v6"); a("v_lshl_add_u32 v7, v6, 2, v7"); a("v_add_u32 v7, 0x200, v7")
    a("v_cmp_gt_u32 vcc, 8, v1"); a("v_cndmask_b32 v5, v7, v5, vcc"); a("v_cvt_f32_u32 v26, v5")
    a("v_lshlrev_b32 v5, 7, v1"); a("v_add_u32 v5, 0x400, v5"); a("v_cvt_f32_u32 v27, v5")
    a("v_mul_u32_u24 v28, 3200, v3"); a(f"v_add_u32 v28, {KTAB}, v28")
    a("v_and_b32 v5, 1, v2"); a("v_lshlrev_b32 v5, 2, v5"); a("v_lshrrev_b32 v6, 1, v2"); a("v_lshl_add_u32 v5, v6, 7, v5"); a("v_lshl_add_u32 v29, v1, 3, v5")
    a("v_lshlrev_b32 v5, 6, v2"); a("v_lshl_add_u32 v6, v1, 2, v5"); a("v_add_u32 v6, 256, v6"); a("v_lshl_add_u32 v7, v1, 1, v5"); a("v_add_u32 v7, 256, v7")
    a("v_cmp_gt_u32 vcc, 2, v2"); a("v_cndmask_b32 v30, v7, v6, vcc")
    a("v_mov_b32 v6, 32"); a("v_cndmask_b32 v6, v6, 2, vcc"); a("v_add_u32 v31, v30, v6")
    a("v_add_u32 v6, v5, v1"); a("v_add_u32 v32, 512, v6")
    for k,(b,o) in enumerate([(29,0),(29,1),(29,2),(29,3),(30,0),(30,1),(31,0),(31,1),(32,0),(32,16),(32,32),(32,48)]):
        a(f"v_add_u32 v5, {o}, v{b}"); a("v_lshrrev_b32 v6, 5, v5"); a("v_add_u32 v5, v5, v6"); a(f"v_lshl_add_u32 v{50+k}, v5, 2, v28")
    a("v_lshlrev_b32 v5, 3, v0"); a("v_sub_u32 v5, 0x7ff, v5"); a("s_movk_i32 s67, 0xbd80"); a(f"s_mov_b32 s64, {KTAB}")
    for e in range(0,8,2):
        a(f"v_subrev_u32 v6, {e}, v5"); a(f"v_subrev_u32 v7, {e+1}, v5"); a("v_cvt_f32_u32 v72, v6"); a("v_cvt_f32_u32 v73, v7")
        a("v_cvt_pk_bf16_f32 v72, v72, v73"); a("v_lshrrev_b32 v73, 16, v72"); a("v_and_b32 v72, 0xffff, v72"); a("v_add_u32 v72, s67, v72"); a("v_add_u32 v73, s67, v73")
        a("v_cmp_gt_u32 vcc, 0x80, v6"); a("v_cndmask_b32 v72, v72, v6, vcc"); a("v_cmp_gt_u32 vcc, 0x80, v7"); a("v_cndmask_b32 v73, v73, v7, vcc")
        a("v_lshrrev_b32 v6, 5, v72"); a("v_add_u32 v72, v72, v6"); a("v_lshrrev_b32 v7, 5, v73"); a("v_add_u32 v73, v73, v7")
        a(f"v_lshl_add_u32 v{GI+e}, v72, 2, s64"); a(f"v_lshl_add_u32 v{GI+1+e}, v73, 2, s64")
    a("v_lshlrev_b32 v108, 4, v0"); a(f"v_add_u32 v108, {KR0}, v108")
def kgen(a,vq,dd,hooks={}):
    a("s_mov_b32 s77, 0x3fb8aa3b"); a("s_mov_b32 s78, 0xffff0000"); a("s_mov_b32 s79, 0x3e22f983")
    if dd==0: k_setup(a)
    for i in range(4): a(f"v_mov_b32 v{128+i}, 0")
    a("v_bfe_u32 v5, v0, 5, 1"); a(f"v_mul_u32_u24 v5, {KRB}, v5"); a("v_and_b32 v6, 31, v0"); a("v_lshl_add_u32 v5, v6, 4, v5"); a(f"v_add_u32 v5, {KR0+2*KRB*dd+4096}, v5")
    masked(a,"v_cmp_gt_u32 vcc, 64, v0",lambda: a("ds_write_b128 v5, v[128:131]"))
    a("s_waitcnt lgkmcnt(0)")
    a("s_lshl_b32 s3, s82, 16" if dd==0 else "s_and_b32 s3, s82, 0xffff0000")
    a("v_mov_b32 v33, s3"); a("v_mul_f32 v33, s77, v33"); a("v_exp_f32 v33, v33"); a("v_cvt_pk_bf16_f32 v33, v33, v33"); a("v_and_b32 v33, s78, v33"); a("v_add_f32 v34, v33, v33")
    A=38
    for i in range(12): a(f"v_mov_b32 v{A+i}, 0")
    def valu(n):
        P=208; q=n>>1; T=132+18*(n&3) if False else 132+22*(n&1)+0; D=33; o=[]
        T=120+22*(n&3) if False else [132,154,176,64][n&3]
        def unp(dst,src): o.append(f"v_and_b32 v{dst}, s78, v{src+q}" if n&1 else f"v_lshlrev_b32 v{dst}, 16, v{src+q}")
        unp(T,P); unp(T+1,P+4); unp(T+2,P+8); unp(T+3,P+12)
        o+=[f"v_mul_f32 v{T}, s77, v{T}", f"v_exp_f32 v{T}, v{T}", f"v_mul_f32 v{T+1}, v{T+1}, v{D}", f"v_mul_f32 v{T+2}, v{T+2}, v{D+1}",
            f"v_cvt_pk_bf16_f32 v{T}, v{T}, v{T}", f"v_and_b32 v{T}, s78, v{T}", f"v_mul_f32 v{T+3}, v{T+3}, v{D+1}", f"v_mul_f32 v{T}, v{T}, v{D}",
            f"v_mul_f32 v{T+1}, s79, v{T+1}", f"v_mul_f32 v{T}, s77, v{T}"]
        for k in range(4): o+=[f"v_mul_f32 v{T+4+k}, -v{T}, v{24+k}", f"v_mul_f32 v{T+8+k}, v{T+1}, v{24+k}"]
        for k in range(4): o+=[f"v_exp_f32 v{T+4+k}, v{T+4+k}", f"v_fract_f32 v{T+8+k}, v{T+8+k}"]
        for k in range(4): o+=[f"v_cos_f32 v{T+12+k}, v{T+8+k}", f"v_sin_f32 v{T+16+k}, v{T+8+k}"]
        for k in range(4): o+=[f"v_mul_f32 v{T+12+k}, v{T+12+k}, v{T+4+k}", f"v_mul_f32 v{T+16+k}, v{T+16+k}, v{T+4+k}"]
        o+=[f"v_mul_f32 v{T+20}, v{T+2}, v{T+12}", f"v_mul_f32 v{T+21}, v{T+2}, v{T+16}", f"v_fma_f32 v{T+20}, -v{T+3}, v{T+16}, v{T+20}", f"v_fma_f32 v{T+21}, v{T+3}, v{T+12}, v{T+21}", f"v_sub_f32 v{T+21}, 0, v{T+21}"]
        return o
    def mfmas(n):
        T=[132,154,176,64][n&3]
        return [f"v_mfma_f32_16x16x4_f32 {R(A+4*tau)}, v{T+13+4*part+tau}, v{T+20+part}, {R(A+4*tau)}" for part in range(2) for tau in range(3)]
    vq.wait_for(a,lambda t:t==("P",dd))
    for i in range(16): a(f"v_mov_b32 v{208+i}, v{224+16*dd+i}")
    pend=[]
    for n in range(0,8,2):
        if n in hooks: hooks[n]()
        o=[x for pr in zip(valu(n),valu(n+1)) for x in pr]
        for k,ins in enumerate(o):
            a(ins)
            if pend and k%8==4: a(pend.pop(0))
        while pend: a(pend.pop(0))
        pend=mfmas(n)+mfmas(n+1)
    while pend: a(pend.pop(0))
    for i in range(12): a(f"ds_write_b32 v{50+i}, v{A+i}")
    a("s_waitcnt lgkmcnt(0)"); a("s_barrier")
    B0=132
    for e in range(8):
        for w in range(4): a(f"ds_read_b32 v{B0+4*e+w}, v{GI+e} offset:{3200*w}")
    a("s_waitcnt lgkmcnt(0)")
    for e in range(8):
        b=B0+4*e; a(f"v_add_f32 v{b}, v{b}, v{b+1}"); a(f"v_add_f32 v{b+2}, v{b+2}, v{b+3}"); a(f"v_add_f32 v{b}, v{b}, v{b+2}")
    O=110
    for p in range(4):
        x0=B0+8*p; x1=x0+4
        a(f"v_cvt_pk_bf16_f32 v{O+p}, v{x0}, v{x1}"); a(f"v_lshlrev_b32 v{O+8}, 16, v{O+p}"); a(f"v_and_b32 v{O+9}, s78, v{O+p}")
        a(f"v_sub_f32 v{O+8}, v{x0}, v{O+8}"); a(f"v_sub_f32 v{O+9}, v{x1}, v{O+9}"); a(f"v_cvt_pk_bf16_f32 v{O+4+p}, v{O+8}, v{O+9}")
    a(f"ds_write_b128 v108, {R(O)} offset:{2*KRB*dd}"); a(f"ds_write_b128 v108, {R(O+4)} offset:{2*KRB*dd+KRB}")
    a("s_waitcnt lgkmcnt(0)"); a("s_barrier")
def conv_loads(a,vq):
    a(f"s_mul_i32 s3, s2, {2*XNT_STRIDE}"); a(f"s_movk_i32 s66, {XNT_STRIDE}")
    a("v_lshlrev_b32 v5, 4, v0"); a("v_add_u32 v6, s3, v5"); a("v_add_u32 v7, 4096, v6")
    def body():
        for dd,b in ((0,176),(1,248)):
            for q in range(2): a(f"buffer_load_dwordx4 {R(b+4*q)}, v7, {S4(XNT)}, {'s66' if dd else '0'} offen offset:{16*q}{SC}")
    masked(a,"v_cmp_gt_u32 vcc, 2, v0",body)
    for dd,b in ((0,168),(1,240)):
        for q in range(2): a(f"buffer_load_dwordx4 {R(b+4*q)}, v6, {S4(XNT)}, {'s66' if dd else '0'} offen offset:{16*q}{SC}"); vq.issue(("U",dd))
def conv(a,vq,dd,st_):
    a("v_lshlrev_b32 v5, 4, v0"); a("v_add_u32 v10, 4096, v5")
    def copies(base,vaddr):
        for s in range(8):
            q=s>>1
            if s&1:
                for k in range(4): a(f"v_alignbit_b32 v{16+4*s+k}, v{base+q+k+1}, v{base+q+k}, 16")
                src=16+4*s
            elif q&1:
                for k in range(4): a(f"v_mov_b32 v{16+4*s+k}, v{base+q+k}")
                src=16+4*s
            else: src=base+q
            a(f"ds_write_b128 v{vaddr}, {R(src)} offset:{s*CSTR+16*COFF[s]}")
    a("v_add_u32 v6, 1, v1"); a("v_and_b32 v7, 7, v6"); a(f"v_mul_u32_u24 v8, {CSTR}, v7")
    pk=sum(c<<(4*i) for i,c in enumerate(COFF)); a(f"s_mov_b32 s67, {pk}")
    a("v_lshlrev_b32 v9, 2, v7"); a("v_lshrrev_b32 v9, v9, s67"); a("v_and_b32 v9, 15, v9"); a("v_lshl_add_u32 v8, v9, 4, v8")
    a("v_and_b32 v6, 0x18, v6"); a("v_lshl_add_u32 v6, v2, 3, v6"); a("v_lshl_add_u32 v8, v6, 1, v8")
    a("s_lshl_b32 s64, s68, 7"); a("v_add_u32 v11, s64, v8")
    a("v_lshlrev_b32 v6, 5, v1"); a("v_lshlrev_b32 v7, 4, v2"); a("v_sub_u32 v6, v7, v6"); a(f"s_add_u32 s64, s64, {KR0+2*KRB*dd+2*2032-64*56}"); a("v_add_u32 v12, s64, v6")
    vq.wait_for(a,lambda t:t==("U",dd))
    copies((168,240)[dd],5); masked(a,"v_cmp_gt_u32 vcc, 2, v0",lambda: copies((176,248)[dd],10))
    ACB=208 if True else 0
    a("s_waitcnt lgkmcnt(0)"); a("s_barrier"); st_(a,f"cv{dd}")
    acc=lambda C: R(208+4*C)
    for i in range(32): a(f"v_mov_b32 v{208+i}, 0")
    RA=lambda st,i: R(16+96*st+4*i); RH=lambda st,i: R(48+96*st+4*i); RL=lambda st,i: R(80+96*st+4*i)
    def loads(st,b):
        out=[]
        for i in range(8): out+=[f"ds_read_b128 {RA(st,i)}, v11 offset:{512*i+64*b}", f"ds_read_b128 {RH(st,i)}, v12 offset:{64*(b-8*i+56)}", f"ds_read_b128 {RL(st,i)}, v12 offset:{64*(b-8*i+56)+KRB}"]
        return out
    for l in loads(0,0): a(l)
    for b in range(2):
        nxt=loads(1,1) if b==0 else []
        a("s_waitcnt lgkmcnt(0)"); k=0
        for C in range(8):
            for ap in range(C+1):
                m=C-ap
                a(f"v_mfma_f32_16x16x32_bf16 {acc(C)}, {RA(b,ap)}, {RH(b,m)}, {acc(C)}"); a(f"v_mfma_f32_16x16x32_bf16 {acc(C)}, {RA(b,ap)}, {RL(b,m)}, {acc(C)}")
                if nxt and k>=4: a(nxt.pop(0))
                k+=1
        while nxt: a(nxt.pop(0))
    a("v_lshlrev_b32 v5, 4, v4"); a("s_mul_i32 s64, s68, 6144"); a(f"s_add_u32 s64, s64, {XCH}"); a("v_add_u32 v6, s64, v5")
    Le=lab("CXE"); a("s_nop 7")
    for w in range(4):
        Lw=lab("CXW"); a(f"s_cmp_lg_u32 s68, {w}"); a(f"s_cbranch_scc1 {Lw}")
        for C in range(8):
            if C>>1==w: continue
            a(f"ds_write_b128 v6, {acc(C)} offset:{1024*((C-2*w-2)%8)}")
        for i in range(8): a(f"v_mov_b32 v{16+i}, v{208+8*w+i}")
        a(f"s_branch {Le}"); a(f"{Lw}:")
    a(f"{Le}:"); a("s_waitcnt lgkmcnt(0)"); a("s_barrier")
    for k in range(3):
        a(f"s_sub_u32 s64, s68, {k+1}"); a("s_and_b32 s64, s64, 3"); a("s_mul_i32 s64, s64, 6144"); a(f"s_add_u32 s64, s64, {XCH}"); a("v_add_u32 v7, s64, v5")
        for c in range(2): a(f"ds_read_b128 {R(24+8*k+4*c)}, v7 offset:{1024*(2*k+c)}")
    a("s_lshl_b32 s64, s68, 10"); a("v_lshlrev_b32 v8, 5, v1"); a("v_lshl_add_u32 v8, v2, 3, v8"); a("v_add_u32 v8, s64, v8"); a("v_add_u32 v9, s64, v5")
    a("s_lshl_b32 s3, s2, 13"); a(f"s_add_u32 s3, s3, {4096*dd}"); a("s_add_u32 s3, s3, s64"); a("v_add_u32 v10, s3, v5")
    a("s_waitcnt lgkmcnt(0)")
    for c in range(2):
        for k in range(4):
            b=16+4*c+k; a(f"v_add_f32 v{b}, v{b}, v{b+8}"); a(f"v_add_f32 v{b+16}, v{b+16}, v{b+24}"); a(f"v_add_f32 v{b}, v{b}, v{b+16}")
        a(f"v_cvt_pk_bf16_f32 v{48+2*c}, v{16+4*c}, v{17+4*c}"); a(f"v_cvt_pk_bf16_f32 v{49+2*c}, v{18+4*c}, v{19+4*c}")
        a(f"ds_write_b64 v8, {R(48+2*c,2)} offset:{512*c}")
    a("s_waitcnt lgkmcnt(0)"); a("ds_read_b128 v[52:55], v9"); a("s_waitcnt lgkmcnt(0)")
    a(f"buffer_store_dwordx4 v[52:55], v10, {S4(YT)}, 0 offen{SC}"); vq.issue(("S",2))
    a("s_barrier")
def role_s(a,st):
    vq=VmQ()
    s_loads(a,vq)
    SS=lambda i: a(f"s_memrealtime s[{84+2*i}:{85+2*i}]") if STAMPS else None
    SS(0); kgen(a,vq,0,{6:lambda:s_warm(a)}); SS(1)
    kgen(a,vq,1,{2:lambda:token_issue(a,vq)}); SS(2)
    token_get(a,vq); xn_poll_addr(a,16); poll_issue(a,vq,16,20,("PX",0),4); poll_check(a,vq,16,20,("PX",0),4); SS(3)
    conv_loads(a,vq); s_warm_wd(a); conv(a,vq,0,lambda a,n:None); SS(4)
    conv(a,vq,1,lambda a,n:None); SS(5)
    signal(a,vq,2,("S",2)); SS(6)
    if STAMPS:
        a("s_load_dwordx2 s[4:5], s[0:1], 104"); a("s_waitcnt lgkmcnt(0) vmcnt(0)"); srd(a,52,4,5,1<<20,add=(48<<20)+65536)
        a("v_lshrrev_b32 v1, 6, v0"); a("s_lshl_b32 s3, s2, 8"); a("v_lshlrev_b32 v1, 6, v1"); a("v_add_u32 v1, s3, v1")
        for i in range(7): a(f"v_mov_b32 v2, s{84+2*i}"); a(f"buffer_store_dword v2, v1, s[52:55], 0 offen offset:{4*i}")
NAME=m8.NAME
def build():
    a=Asm(); st=St()
    a(f"{NAME}:"); a("s_cmp_ge_u32 s2, 512"); a("s_cbranch_scc1 K_END"); st(a,"start")
    setup(a)
    a("s_cmp_ge_u32 s81, 256"); a("s_cbranch_scc1 ROLE_S")
    role_f(a,st); st.dump(a); a("s_endpgm")
    a("ROLE_S:"); role_s(a,st)
    a("K_END:"); a("s_endpgm")
    return a.render()
if __name__=="__main__":
    HDR=open("parallel_sum__ssm_conv_s4d__swiglu_ffn__prompt.s.ref").read().split("; Override launch")[0]
    s=HDR+f"; @launch grid=(512,1,1) block=(256,1,1) lds={LDS}\n"+'.amdgcn_target "amdgcn-amd-amdhsa--gfx950"\n.text\n'+f".globl {NAME}\n.p2align 8\n.type {NAME},@function\n"+build()
    s+=f'''.section .rodata,"a"
.p2align 6
.amdhsa_kernel {NAME}
  .amdhsa_next_free_vgpr 256
  .amdhsa_next_free_sgpr 102
  .amdhsa_accum_offset 256
  .amdhsa_group_segment_fixed_size 0
  .amdhsa_kernarg_size 112
  .amdhsa_user_sgpr_count 2
  .amdhsa_user_sgpr_kernarg_segment_ptr 1
  .amdhsa_system_sgpr_workgroup_id_x 1
.end_amdhsa_kernel
'''
    open(sys.argv[1],"w").write(s)
```

```python
import os, sys
from asmlib import Asm
import m8
from m8 import VmQ, srd, R, S4, lab, masked, emit_g, X,XN,XNT,HH,YT,WG,WU,WD,OUT,DSK,DBG,FL, WS_XNT,WS_YT,WS_H,WS_FL,XNT_STRIDE,XNT_SIZE,GSTR,MATB,STG,KRB,COFF,CSTR,UB,PHI,SC
STAMPS=m8.STAMPS; SKIP=m8.SKIP
LDS=81920
PK=os.environ.get('PK','0')=='1'
NSTB=3; ARING=NSTB*STG; ASLOT=16384; NSTA=2; LNT=ARING+ASLOT
class St(m8.St):
    def dump(s,a):
        if not STAMPS: return
        a("s_load_dwordx2 s[4:5], s[0:1], 104"); a("s_waitcnt lgkmcnt(0) vmcnt(0)")
        srd(a,52,4,5,1<<20,add=(48<<20))
        a("v_lshrrev_b32 v1, 6, v0"); a("s_lshl_b32 s3, s2, 8"); a("v_lshlrev_b32 v1, 6, v1"); a("v_add_u32 v1, s3, v1")
        for i in range(s.n): a(f"v_mov_b32 v2, s{84+2*i}"); a(f"buffer_store_dword v2, v1, s[52:55], 0 offen offset:{4*i}")
        print("stamps:",s.names)
def setup(a):
    a("s_load_dwordx16 s[68:83], s[0:1], 0"); a("s_load_dwordx8 s[52:59], s[0:1], 64"); a("s_load_dwordx4 s[60:63], s[0:1], 96")
    a("v_and_b32 v1, 15, v0"); a("v_bfe_u32 v2, v0, 4, 2"); a("v_lshrrev_b32 v3, 6, v0"); a("v_and_b32 v4, 63, v0")
    a("s_waitcnt lgkmcnt(0)")
    srd(a,X,68,69,2<<20); srd(a,XN,62,63,2<<20); srd(a,XNT,62,63,XNT_SIZE,add=WS_XNT); srd(a,HH,62,63,2048*3584,add=WS_H)
    srd(a,YT,62,63,2<<20,add=WS_YT); srd(a,WG,52,53,512*3584); srd(a,WU,54,55,512*3584); srd(a,WD,56,57,1792*1024)
    srd(a,OUT,58,59,2<<20); srd(a,DSK,80,81,1024); srd(a,DBG,60,61,256); srd(a,FL,62,63,65536,add=WS_FL)
    a("v_readfirstlane_b32 s68, v3"); a("s_mov_b32 s81, s2"); a("s_and_b32 s2, s2, 255")
token_publish=m8.token_publish; token_issue=m8.token_issue; token_get=m8.token_get; poll_issue=m8.poll_issue; poll_check=m8.poll_check
def signal(a,vq,phase,tag,t=5):
    vq.wait_for(a,lambda x:x==tag); a("s_barrier")
    a(f"v_mov_b32 v{t}, s83"); a("s_lshl_b32 s64, s2, 2"); a(f"s_add_u32 s64, s64, {phase*8192}"); a(f"v_lshlrev_b32 v{t+1}, 10, v0"); a(f"v_add_u32 v{t+1}, s64, v{t+1}")
    masked(a,"v_cmp_gt_u32 vcc, 8, v0",lambda: a(f"buffer_store_dword v{t}, v{t+1}, {S4(FL)}, 0 offen sc1"))
def xn_poll_addr(a,v,ph=0): a("s_and_b32 s64, s2, 7"); a("s_lshl_b32 s64, s64, 10"); a(f"s_add_u32 s64, s64, {ph*8192}"); a(f"v_lshlrev_b32 v{v}, 4, v4"); a(f"v_add_u32 v{v}, s64, v{v}")
def tile_ids(a):
    a("s_and_b32 s64, s2, 7"); a("s_lshr_b32 s65, s2, 3")
    a("s_and_b32 s70, s64, 1"); a("s_lshl_b32 s70, s70, 3"); a("s_and_b32 s66, s65, 7"); a("s_add_u32 s70, s70, s66")
    a("s_lshr_b32 s71, s64, 1"); a("s_lshl_b32 s71, s71, 2"); a("s_lshr_b32 s66, s65, 3"); a("s_add_u32 s71, s71, s66")
def f_p0(a,vq):
    m8.LNT=LNT
    m8.p0_addr(a); m8.p0_loads(a,vq)
def g1_setup(a):
    tile_ids(a)
    a("v_mul_u32_u24 v8, 0x2493, v4"); a("v_lshrrev_b32 v8, 17, v8"); a("v_mul_u32_u24 v9, 14, v8"); a("v_sub_u32 v9, v4, v9")
    a("v_mul_u32_u24 v8, 3584, v8"); a("v_lshl_add_u32 v8, v9, 4, v8"); a("s_mul_i32 s66, s71, 224"); a("v_add_u32 v10, s66, v8")
    a("s_mul_i32 s72, s68, 28672"); a(f"s_mul_i32 s73, s68, {2*GSTR}")
    a(f"v_mul_u32_u24 v5, {2*GSTR}, v2"); a("v_lshrrev_b32 v6, 2, v1"); a("v_mul_u32_u24 v6, 224, v6"); a("v_and_b32 v7, 3, v0"); a("v_lshl_add_u32 v6, v7, 3, v6"); a("v_add_u32 v11, v5, v6")
    a("v_lshrrev_b32 v5, 3, v4"); a("v_and_b32 v6, 7, v4"); a("s_lshl_b32 s66, s70, 7"); a("s_lshl_b32 s67, s68, 5"); a("s_add_u32 s66, s66, s67")
    a("v_add_u32 v7, s66, v5"); a("v_lshlrev_b32 v7, 10, v7"); a("v_xor_b32 v8, v6, v2"); a("v_lshl_add_u32 v12, v8, 4, v7"); a("v_xor_b32 v8, 4, v8"); a("v_lshl_add_u32 v13, v8, 4, v7")
    a("s_lshl_b32 s74, s68, 12"); a(f"s_add_u32 s74, s74, {ARING}")
    a("v_lshrrev_b32 v7, 1, v1"); a("v_xor_b32 v8, v2, v7"); a("v_lshlrev_b32 v9, 7, v1"); a("v_add_u32 v9, s74, v9")
    a("v_lshl_add_u32 v14, v8, 4, v9"); a("v_xor_b32 v8, 4, v8"); a("v_lshl_add_u32 v15, v8, 4, v9")
def bdma_l(s):
    return [([f"s_add_u32 s66, s72, {s*114688+gi*14336}", f"s_add_u32 m0, s73, {(s%NSTB)*STG+mat*MATB+gi*GSTR}", "s_mov_b32 exec_hi, 0x00ffffff",
              f"buffer_load_dwordx4 v10, {S4((WG,WU)[mat])}, s66 offen lds", "s_mov_b32 exec_hi, -1"],("B",s)) for mat in range(2) for gi in range(2)]
def adma_l(c):
    return [([f"s_mov_b32 s66, {q*8192+c*128}", f"s_add_u32 m0, s74, {(c%NSTA)*ASLOT+q*1024}", f"buffer_load_dwordx4 v{12+(q&1)}, {S4(XN)}, s66 offen{SC} lds"],("A",c)) for q in range(4)]
BF=lambda st,mat,j: 16+56*st+28*mat+4*j
AC=lambda rt,mat,j: 128+56*rt+28*mat+4*j
AF=lambda st,rt: 240+8*st+4*rt
def g1_reads(s):
    st=s&1; out=[f"ds_read_b128 {R(AF(st,rt))}, v{14+(s&1)} offset:{((s>>1)%NSTA)*ASLOT+rt*2048}" for rt in range(2)]
    for j in range(7):
        for mat in range(2):
            for h in range(2): out.append(f"ds_read_b64_tr_b16 {R(BF(st,mat,j)+2*h,2)}, v11 offset:{(s%NSTB)*STG+mat*MATB+h*GSTR+32*j}")
    return out
def g1_main(a,vq,st_):
    for i in range(112): a(f"v_mov_b32 v{128+i}, 0")
    vq.wait_for(a,lambda t:t in(("B",0),("A",0))); a("s_barrier"); st_(a,"g1_loop")
    for l in g1_reads(0): a(l)
    for s in range(16):
        st=s&1
        if s==8: st_(a,"g1_s8")
        vq.wait_for(a,lambda t:t==("B",s+1) or t==("A",(s+1)>>1)); a("s_waitcnt lgkmcnt(0)"); a("s_barrier")
        dm=[]
        if s&1 and (s>>1)+NSTA<8: dm+=adma_l((s>>1)+NSTA)
        if s+NSTB<16: dm+=bdma_l(s+NSTB)
        nxt=g1_reads(s+1) if s<15 else []; k=0
        for j in range(7):
            for mat in range(2):
                for rt in range(2):
                    d=AC(rt,mat,j)
                    a(f"v_mfma_f32_16x16x32_bf16 {R(d)}, {R(BF(st,mat,j))}, {R(AF(st,rt))}, {R(d)}")
                    if nxt: a(nxt.pop(0))
                    if nxt and j==0: a(nxt.pop(0))
                    if dm and k%3==1: emit_g(a,vq,dm.pop(0))
                    k+=1
        while dm: emit_g(a,vq,dm.pop(0))
def g1_epilogue(a,vq):
    a("s_mov_b32 s66, 0xffff0000"); a("s_mov_b32 s67, 0xbfb8aa3b")
    a("v_mul_u32_u24 v5, 240, v1"); a("v_lshl_add_u32 v5, v2, 3, v5"); a("v_add_u32 v5, s74, v5")
    a("s_lshl_b32 s64, s70, 7"); a("s_lshl_b32 s65, s68, 5"); a("s_add_u32 s64, s64, s65"); a("s_mul_i32 s64, s64, 3584"); a("s_mul_i32 s65, s71, 224"); a("s_add_u32 s75, s64, s65"); a("s_add_u32 s76, s75, 57344")
    for i in range(4):
        a(f"v_add_u32 v6, {64*i}, v4"); a("v_mul_u32_u24 v7, 0x2493, v6"); a("v_lshrrev_b32 v7, 17, v7"); a("v_mul_u32_u24 v9, 14, v7"); a("v_sub_u32 v9, v6, v9")
        a("v_mul_u32_u24 v6, 3584, v7"); a(f"v_lshl_add_u32 v{104+i}, v9, 4, v6")
        a("v_mul_u32_u24 v6, 240, v7"); a("v_lshl_add_u32 v6, v9, 4, v6"); a(f"v_add_u32 v{108+i}, s74, v6")
    for rt in range(2):
        for j in range(7):
            g=AC(rt,0,j); u=AC(rt,1,j); T=16+16*(j&1)
            a(f"v_cvt_pk_bf16_f32 v{T}, v{g}, v{g+1}"); a(f"v_cvt_pk_bf16_f32 v{T+1}, v{g+2}, v{g+3}")
            a(f"v_lshlrev_b32 v{T+2}, 16, v{T}"); a(f"v_and_b32 v{T+3}, s66, v{T}"); a(f"v_lshlrev_b32 v{T+4}, 16, v{T+1}"); a(f"v_and_b32 v{T+5}, s66, v{T+1}")
            for k in range(4): a(f"v_mul_f32 v{T+6+k}, s67, v{T+2+k}")
            for k in range(4): a(f"v_exp_f32 v{T+6+k}, v{T+6+k}")
            a(f"v_cvt_pk_bf16_f32 v{T}, v{u}, v{u+1}"); a(f"v_cvt_pk_bf16_f32 v{T+1}, v{u+2}, v{u+3}")
            a(f"v_lshlrev_b32 v{T+10}, 16, v{T}"); a(f"v_and_b32 v{T+11}, s66, v{T}"); a(f"v_lshlrev_b32 v{T+12}, 16, v{T+1}"); a(f"v_and_b32 v{T+13}, s66, v{T+1}")
            for k in range(4): a(f"v_add_f32 v{T+6+k}, 1.0, v{T+6+k}")
            for k in range(4): a(f"v_rcp_f32 v{T+6+k}, v{T+6+k}")
            for k in range(4): a(f"v_mul_f32 v{T+2+k}, v{T+2+k}, v{T+6+k}")
            a(f"v_cvt_pk_bf16_f32 v{T}, v{T+2}, v{T+3}"); a(f"v_cvt_pk_bf16_f32 v{T+1}, v{T+4}, v{T+5}")
            a(f"v_lshlrev_b32 v{T+2}, 16, v{T}"); a(f"v_and_b32 v{T+3}, s66, v{T}"); a(f"v_lshlrev_b32 v{T+4}, 16, v{T+1}"); a(f"v_and_b32 v{T+5}, s66, v{T+1}")
            for k in range(4): a(f"v_mul_f32 v{T+2+k}, v{T+2+k}, v{T+10+k}")
            a(f"v_cvt_pk_bf16_f32 v{T+14}, v{T+2}, v{T+3}"); a(f"v_cvt_pk_bf16_f32 v{T+15}, v{T+4}, v{T+5}")
            a(f"ds_write_b64 v5, {R(T+14,2)} offset:{rt*ASLOT+32*j}")
        a("s_waitcnt lgkmcnt(0)")
        for q in range(4):
            if q==3: a("s_mov_b32 exec_hi, 0")
            a(f"ds_read_b128 {R(112+4*q)}, v{108+q} offset:{rt*ASLOT}")
        a("s_mov_b32 exec_hi, -1")
        for q in range(4):
            a(f"s_waitcnt lgkmcnt({3-q})")
            if q==3: a("s_mov_b32 exec_hi, 0")
            a(f"buffer_store_dwordx4 {R(112+4*q)}, v{104+q}, {S4(HH)}, s{75+rt} offen{SC}"); vq.issue(("S",1))
        a("s_mov_b32 exec_hi, -1")
EPX=65536; NSL=4
def g2_setup(a):
    a("s_and_b32 s64, s2, 7"); a("s_lshr_b32 s65, s2, 3"); a("s_lshl_b32 s70, s64, 2"); a("s_lshr_b32 s66, s65, 3"); a("s_add_u32 s70, s70, s66"); a("s_and_b32 s71, s65, 7")
    a("s_lshl_b32 s72, s70, 6"); a("s_lshl_b32 s73, s71, 7")
    a("s_lshl_b32 s75, s68, 11")
    a("s_and_b32 s77, s68, 1"); a("s_lshr_b32 s78, s68, 1")
    a("v_lshrrev_b32 v5, 3, v4"); a("v_and_b32 v6, 7, v4"); a("s_lshl_b32 s74, s68, 4")
    a("s_add_u32 s66, s72, s74"); a("v_add_u32 v7, s66, v5"); a("v_mul_u32_u24 v8, 3584, v7")
    a("v_xor_b32 v9, v6, v2"); a("v_lshl_add_u32 v10, v9, 4, v8"); a("v_xor_b32 v9, 4, v9"); a("v_lshl_add_u32 v11, v9, 4, v8"); a("v_add_u32 v11, 28672, v11")
    a("v_lshlrev_b32 v7, 10, v7"); a("v_lshl_add_u32 v7, v6, 4, v7"); a("v_add_u32 v14, s73, v7")
    a("v_add_u32 v7, s74, v5"); a("v_lshlrev_b32 v7, 10, v7"); a("v_add_u32 v7, s73, v7")
    a("v_and_b32 v8, 1, v2"); a("v_lshlrev_b32 v8, 1, v8"); a("v_xor_b32 v8, v6, v8"); a("v_lshl_add_u32 v12, v8, 4, v7"); a("v_xor_b32 v8, 4, v8"); a("v_lshl_add_u32 v13, v8, 4, v7"); a("v_add_u32 v13, 8192, v13")
    a("s_lshl_b32 s66, s71, 6"); a("s_add_u32 s66, s66, s74"); a("v_add_u32 v7, s66, v5"); a("v_lshlrev_b32 v7, 12, v7"); a("v_lshl_add_u32 v7, v6, 4, v7"); a("s_lshl_b32 s66, s72, 1"); a("v_add_u32 v15, s66, v7")
    a("s_lshl_b32 s66, s77, 12"); a("v_lshrrev_b32 v7, 1, v1"); a("v_xor_b32 v8, v2, v7"); a("v_lshlrev_b32 v9, 7, v1"); a("v_add_u32 v9, s66, v9"); a("v_lshl_add_u32 v16, v8, 4, v9"); a("v_xor_b32 v8, 4, v8"); a("v_lshl_add_u32 v17, v8, 4, v9")
    a("v_lshrrev_b32 v7, 2, v1"); a("v_lshl_add_u32 v8, v2, 3, v7"); a("v_lshlrev_b32 v8, 7, v8"); a("v_and_b32 v9, 1, v0"); a("v_lshl_add_u32 v8, v9, 3, v8")
    a("v_bfe_u32 v9, v1, 3, 1"); a("v_lshlrev_b32 v9, 1, v9"); a("v_and_b32 v7, 1, v2"); a("v_lshl_add_u32 v9, v7, 2, v9"); a("v_bfe_u32 v7, v0, 1, 1"); a("v_xor_b32 v9, v9, v7")
    a("s_lshl_b32 s66, s78, 2"); a("v_xor_b32 v9, s66, v9")
    for jj in range(2): a(f"v_xor_b32 v7, {2*jj}, v9"); a(f"v_lshl_add_u32 v{18+jj}, v7, 4, v8")
    a(f"s_add_u32 s76, s75, {EPX}")
def g2_dma(c,part):
    out=[]
    for i in range(2):
        if part&1: out.append(([f"s_movk_i32 s66, {c*128}", f"s_add_u32 m0, s75, {(c%NSL)*16384+i*1024}", f"buffer_load_dwordx4 v{10+i}, {S4(HH)}, s66 offen{SC} lds"],("C",c)))
        if part&2: out.append(([f"s_mov_b32 s66, {c*65536}", f"s_add_u32 m0, s75, {(c%NSL)*16384+8192+i*1024}", f"buffer_load_dwordx4 v{12+i}, {S4(WD)}, s66 offen lds"],("C",c)))
    return out
def g2_pre(a,vq):
    for c in range(NSL):
        for g in g2_dma(c,2): emit_g(a,vq,g)
    for ti,(sr,sc) in enumerate(((X,""),(XN,SC))):
        for q in range(2):
            a(f"s_mov_b32 s66, {q*8192}"); a(f"s_add_u32 m0, s76, {ti*8192+q*1024}"); a(f"buffer_load_dwordx4 v14, {S4(sr)}, s66 offen{sc} lds"); vq.issue(("E",0))
    a("s_lshl_b32 s66, s78, 6"); a("s_add_u32 s66, s66, s73"); a("v_lshlrev_b32 v7, 3, v2"); a("v_add_u32 v7, s66, v7")
    for j in range(2): a(f"buffer_load_dwordx2 {R(24+2*j,2)}, v7, {S4(DSK)}, 0 offen offset:{32*j}"); vq.issue(("E",0))
def g2(a,vq,st_):
    for c in range(NSL):
        for g in g2_dma(c,1): emit_g(a,vq,g)
    ACC=lambda j,t: 64+8*j+4*t; HF=lambda st,ks,t: 96+32*st+8*ks+4*t; WF=lambda st,ks,j: 112+32*st+8*ks+4*j
    for i in range(16): a(f"v_mov_b32 v{64+i}, 0")
    NC=28
    def reads(c):
        st=c&1; bo=(c%NSL)*16384; out=[]
        for ks in range(2):
            for t in range(2):
                out.append(f"ds_read_b128 {R(HF(st,ks,t))}, v{16+ks} offset:{bo+t*2048}")
                for h in range(2): out.append(f"ds_read_b64_tr_b16 {R(WF(st,ks,t)+2*h,2)}, v{18+t} offset:{bo+8192+ks*4096+h*512}")
        return out
    vq.wait_for(a,lambda t:t==("C",0)); a("s_barrier"); st_(a,"g2_loop")
    for l in reads(0): a(l)
    for c in range(NC):
        st=c&1
        if c==20:
            a("s_and_b32 s64, s2, 7"); a("s_lshl_b32 s64, s64, 10"); a("s_lshl_b32 s65, s71, 7"); a("s_add_u32 s64, s64, s65"); a(f"s_add_u32 s64, s64, {2*8192}")
            a("v_and_b32 v22, 31, v4"); a("v_lshlrev_b32 v22, 2, v22"); a("v_add_u32 v22, s64, v22"); poll_issue(a,vq,22,23,("PY",0))
        vq.wait_for(a,lambda t:t==("C",c+1)); a("s_waitcnt lgkmcnt(0)")
        if c==25: poll_check(a,vq,22,23,("PY",0))
        else: a("s_barrier")
        dm=g2_dma(c+NSL,3) if c+NSL<NC else []
        if c==25: dm=[([f"s_mov_b32 s66, {q*32768}", f"s_add_u32 m0, s75, {(25%NSL)*16384+q*1024}", f"buffer_load_dwordx4 v15, {S4(YT)}, s66 offen{SC} lds"],("E",0)) for q in range(2)]
        nxt=reads(c+1) if c+1<NC else []
        for ks in range(2):
            for j in range(2):
                for t in range(2):
                    d=ACC(j,t); a(f"v_mfma_f32_16x16x32_bf16 {R(d)}, {R(WF(st,ks,j))}, {R(HF(st,ks,t))}, {R(d)}")
                    if nxt: a(nxt.pop(0))
                    if nxt and ks==0: a(nxt.pop(0))
                    if dm and t: emit_g(a,vq,dm.pop(0))
        while nxt: a(nxt.pop(0))
    st_(a,"g2_epi")
    vq.drain(a); a("s_barrier")
    a("s_lshl_b32 s66, s77, 12"); a("s_lshl_b32 s65, s78, 6"); a("s_add_u32 s66, s66, s65"); a(f"s_add_u32 s66, s66, {EPX}")
    a("v_lshlrev_b32 v5, 7, v1"); a("v_lshl_add_u32 v5, v2, 3, v5"); a("v_add_u32 v5, s66, v5")
    for t in range(2):
        for j in range(2): a(f"ds_read_b64 {R(128+4*t+2*j,2)}, v5 offset:{2048*t+32*j}"); a(f"ds_read_b64 {R(136+4*t+2*j,2)}, v5 offset:{8192+2048*t+32*j}")
    a("v_lshrrev_b32 v6, 2, v1"); a("v_lshl_add_u32 v6, v2, 2, v6"); a("v_lshlrev_b32 v6, 7, v6"); a("v_and_b32 v9, 3, v0"); a("v_lshl_add_u32 v6, v9, 3, v6")
    a("s_lshl_b32 s66, s78, 12"); a("s_lshl_b32 s65, s77, 6"); a("s_add_u32 s66, s66, s65"); a(f"s_add_u32 s66, s66, {(25%NSL)*16384}"); a("v_add_u32 v6, s66, v6")
    for t in range(2):
        for j in range(2): a(f"ds_read_b64_tr_b16 {R(144+4*t+2*j,2)}, v6 offset:{2048*j+32*t}")
    a("s_mov_b32 s67, 0xffff0000"); a("s_waitcnt lgkmcnt(0)")
    for t in range(2):
        for j in range(2):
            for p in range(2):
                b=ACC(j,t)+2*p; k=4*t+2*j+p; Xr=128+k; XNr=136+k; Y=144+k; D=24+2*j+p
                a(f"v_cvt_pk_bf16_f32 v210, v{b}, v{b+1}")
                a(f"v_lshlrev_b32 v211, 16, v{XNr}"); a(f"v_and_b32 v212, s67, v{XNr}"); a(f"v_lshlrev_b32 v213, 16, v{D}"); a(f"v_and_b32 v214, s67, v{D}")
                a("v_mul_f32 v211, v211, v213"); a("v_mul_f32 v212, v212, v214"); a("v_cvt_pk_bf16_f32 v211, v211, v212")
                for src in (Y,Xr):
                    a("v_lshlrev_b32 v212, 16, v211"); a("v_and_b32 v211, s67, v211"); a(f"v_lshlrev_b32 v213, 16, v{src}"); a(f"v_and_b32 v214, s67, v{src}")
                    a("v_add_f32 v212, v213, v212"); a("v_add_f32 v211, v214, v211"); a("v_cvt_pk_bf16_f32 v211, v212, v211")
                a("v_lshlrev_b32 v212, 16, v211"); a("v_and_b32 v211, s67, v211"); a("v_lshlrev_b32 v213, 16, v210"); a("v_and_b32 v214, s67, v210")
                a("v_add_f32 v212, v212, v213"); a("v_add_f32 v211, v211, v214"); a(f"v_cvt_pk_bf16_f32 v{152+k}, v212, v211")
            a(f"ds_write_b64 v5, {R(152+4*t+2*j,2)} offset:{2048*t+32*j}")
    a("v_lshlrev_b32 v7, 4, v4"); a("v_add_u32 v7, s76, v7"); a("s_waitcnt lgkmcnt(0)"); a("s_barrier")
    a("ds_read_b128 v[64:67], v7"); a("ds_read_b128 v[68:71], v7 offset:1024"); a("s_movk_i32 s66, 0x2000"); a("s_waitcnt lgkmcnt(0)")
    a(f"buffer_store_dwordx4 v[64:67], v14, {S4(OUT)}, 0 offen"); a(f"buffer_store_dwordx4 v[68:71], v14, {S4(OUT)}, s66 offen")
def role_f(a,st):
    vq=VmQ(); PR=os.environ.get("PRIO","3"); a(f"s_setprio {PR[0]}")
    token_publish(a); f_p0(a,vq); g1_setup(a)
    m8.LNT=LNT
    if os.environ.get("TOKE","1")=="1":
        vq.wait_for(a,lambda t:t==("X",1)); token_issue(a,vq); m8.p0_compute(a,vq)
    else: m8.p0_compute(a,vq); token_issue(a,vq)
    st(a,"p0_end")
    token_get(a,vq); signal(a,vq,0,("S",0)); st(a,"sig0")
    for s in range(NSTB):
        for g in bdma_l(s): emit_g(a,vq,g)
    signal(a,vq,3,("S",9))
    a("s_and_b32 s64, s2, 7"); a("s_lshl_b32 s64, s64, 10"); a("s_lshl_b32 s65, s70, 6"); a("s_add_u32 s64, s64, s65"); a("v_and_b32 v16, 3, v4"); a("v_lshlrev_b32 v16, 4, v16"); a("v_add_u32 v16, s64, v16")
    poll_issue(a,vq,16,20,("PX",0),4); poll_check(a,vq,16,20,("PX",0),4); st(a,"pc0")
    for c in range(NSTA):
        for g in adma_l(c): emit_g(a,vq,g)
    if os.environ.get("TOUCH","0")=="1":
        a("v_mul_u32_u24 v5, 0x2aab, v0"); a("v_lshrrev_b32 v5, 16, v5"); a("v_mul_u32_u24 v6, 6, v5"); a("v_sub_u32 v6, v0, v6")
        a("s_and_b32 s64, s71, 3"); a("s_lshl_b32 s64, s64, 5"); a("s_lshl_b32 s65, s70, 7"); a("s_add_u32 s64, s64, s65")
        a("v_add_u32 v5, s64, v5"); a("v_lshlrev_b32 v5, 10, v5"); a("v_lshl_add_u32 v5, v6, 7, v5"); a("v_add_u32 v7, 256, v5")
        masked(a,"v_cmp_gt_u32 vcc, 192, v0",lambda: a(f"buffer_load_dword v9, v7, {S4(XN)}, 0 offen{SC}"))
    if len(PR)>1: a(f"s_setprio {PR[1]}")
    g1_main(a,vq,st); st(a,"g1_epi")
    if os.environ.get("HINT","0")=="1":
        a("v_mov_b32 v5, s83"); a("s_lshl_b32 s64, s2, 2"); a(f"s_add_u32 s64, s64, {4*8192}"); a("v_mov_b32 v6, s64")
        masked(a,"v_cmp_eq_u32 vcc, 0, v0",lambda: a(f"buffer_store_dword v5, v6, {S4(FL)}, 0 offen sc1"))
    if len(PR)>2: a(f"s_setprio {PR[2]}")
    g1_epilogue(a,vq)
    signal(a,vq,1,("S",1)); st(a,"sigH")
    g2_setup(a); g2_pre(a,vq)
    a("s_lshr_b32 s64, s70, 1")
    a("s_and_b32 s65, s64, 7"); a("s_lshl_b32 s65, s65, 3"); a("s_lshr_b32 s64, s64, 3"); a("s_add_u32 s64, s64, s65"); a("s_lshl_b32 s64, s64, 2")
    a("s_and_b32 s65, s2, 7"); a("s_lshl_b32 s65, s65, 10"); a("s_add_u32 s64, s64, s65"); a("s_add_u32 s64, s64, 8192")
    a("v_bfe_u32 v212, v4, 2, 2"); a("v_lshlrev_b32 v212, 8, v212"); a("v_and_b32 v210, 3, v4"); a("v_lshl_add_u32 v210, v210, 3, v212"); a("v_add_u32 v210, s64, v210")
    a("s_sleep 16"); poll_issue(a,vq,210,211,("PH",0)); poll_check(a,vq,210,211,("PH",0)); st(a,"g2_start")
    if len(PR)>3: a(f"s_setprio {PR[3]}")
    g2(a,vq,st); st(a,"end")
KR0=UB; KTAB=UB+4*KRB; XCH=KTAB
def s_warm(a):
    tile_ids(a)
    a("v_mul_u32_u24 v120, 0x5556, v0"); a("v_lshrrev_b32 v120, 16, v120"); a("v_mul_u32_u24 v121, 3, v120"); a("v_sub_u32 v121, v0, v121")
    a("s_and_b32 s64, s70, 7"); a("s_mul_i32 s64, s64, 52"); a("s_add_u32 s64, s64, 96")
    a("v_add_u32 v120, s64, v120"); a("v_mul_u32_u24 v120, 3584, v120"); a("v_mul_u32_u24 v121, 110, v121"); a("v_and_b32 v121, 0xfffffffc, v121")
    a("s_mul_i32 s64, s71, 224"); a("v_add3_u32 v120, v120, v121, s64")
    def body(): a(f"buffer_load_dword v124, v120, {S4(WG)}, 0 offen"); a(f"buffer_load_dword v125, v120, {S4(WU)}, 0 offen")
    masked(a,"v_cmp_gt_u32 vcc, 156, v0",body)
def s_warm_wd(a):
    a("s_lshr_b32 s64, s2, 6"); a("s_mul_i32 s64, s64, 448"); a("s_lshl_b32 s64, s64, 10")
    a("s_lshr_b32 s65, s2, 3"); a("s_and_b32 s65, s65, 7"); a("s_lshl_b32 s65, s65, 7"); a("s_add_u32 s64, s64, s65")
    a("v_lshlrev_b32 v121, 10, v0"); a("v_add_u32 v121, s64, v121"); a("s_mov_b32 s66, 0x40000")
    a(f"buffer_load_dword v13, v121, {S4(WD)}, 0 offen")
    masked(a,"v_cmp_gt_u32 vcc, 192, v0",lambda: a(f"buffer_load_dword v14, v121, {S4(WD)}, s66 offen"))
def s_loads(a,vq):
    srd(a,52,70,71,131072); srd(a,56,72,73,131072); srd(a,60,74,75,131072); srd(a,64,76,77,131072)
    a("v_lshrrev_b32 v7, 4, v0"); a("v_lshlrev_b32 v7, 4, v7"); a("s_lshl_b32 s3, s2, 9"); a("v_add_u32 v7, s3, v7")
    for dd in range(2):
        for k in range(4): a(f"buffer_load_dwordx4 {R(224+16*dd+4*k)}, v7, {S4(52+4*k)}, 0 offen offset:{256*dd}"); vq.issue(("P",dd))
    a("s_lshl_b32 s3, s2, 2"); a("s_load_dword s82, s[78:79], s3")
GI=100
def k_setup(a):
    a("v_lshlrev_b32 v5, 3, v1"); a("v_cvt_f32_u32 v24, v5")
    a("v_and_b32 v5, 7, v1"); a("v_lshrrev_b32 v6, 3, v1"); a("v_lshl_add_u32 v5, v6, 7, v5"); a("v_cvt_f32_u32 v25, v5")
    a("v_lshrrev_b32 v5, 2, v1"); a("v_lshlrev_b32 v5, 7, v5"); a("v_and_b32 v6, 3, v1"); a("v_lshl_add_u32 v5, v6, 1, v5"); a("v_add_u32 v5, 0x100, v5")
    a("v_subrev_u32 v6, 8, v1"); a("v_lshrrev_b32 v7, 1, v6"); a("v_lshlrev_b32 v7, 7, v7"); a("v_and_b32 v6, 1, v6"); a("v_lshl_add_u32 v7, v6, 2, v7"); a("v_add_u32 v7, 0x200, v7")
    a("v_cmp_gt_u32 vcc, 8, v1"); a("v_cndmask_b32 v5, v7, v5, vcc"); a("v_cvt_f32_u32 v26, v5")
    a("v_lshlrev_b32 v5, 7, v1"); a("v_add_u32 v5, 0x400, v5"); a("v_cvt_f32_u32 v27, v5")
    a("v_mul_u32_u24 v28, 3200, v3"); a(f"v_add_u32 v28, {KTAB}, v28")
    a("v_and_b32 v5, 1, v2"); a("v_lshlrev_b32 v5, 2, v5"); a("v_lshrrev_b32 v6, 1, v2"); a("v_lshl_add_u32 v5, v6, 7, v5"); a("v_lshl_add_u32 v29, v1, 3, v5")
    a("v_lshlrev_b32 v5, 6, v2"); a("v_lshl_add_u32 v6, v1, 2, v5"); a("v_add_u32 v6, 256, v6"); a("v_lshl_add_u32 v7, v1, 1, v5"); a("v_add_u32 v7, 256, v7")
    a("v_cmp_gt_u32 vcc, 2, v2"); a("v_cndmask_b32 v30, v7, v6, vcc")
    a("v_mov_b32 v6, 32"); a("v_cndmask_b32 v6, v6, 2, vcc"); a("v_add_u32 v31, v30, v6")
    a("v_add_u32 v6, v5, v1"); a("v_add_u32 v32, 512, v6")
    for k,(b,o) in enumerate([(29,0),(29,1),(29,2),(29,3),(30,0),(30,1),(31,0),(31,1),(32,0),(32,16),(32,32),(32,48)]):
        a(f"v_add_u32 v5, {o}, v{b}"); a("v_lshrrev_b32 v6, 5, v5"); a("v_add_u32 v5, v5, v6"); a(f"v_lshl_add_u32 v{50+k}, v5, 2, v28")
    a("v_lshlrev_b32 v5, 3, v0"); a("v_sub_u32 v5, 0x7ff, v5"); a("s_movk_i32 s67, 0xbd80"); a(f"s_mov_b32 s64, {KTAB}")
    for e in range(0,8,2):
        a(f"v_subrev_u32 v6, {e}, v5"); a(f"v_subrev_u32 v7, {e+1}, v5"); a("v_cvt_f32_u32 v72, v6"); a("v_cvt_f32_u32 v73, v7")
        a("v_cvt_pk_bf16_f32 v72, v72, v73"); a("v_lshrrev_b32 v73, 16, v72"); a("v_and_b32 v72, 0xffff, v72"); a("v_add_u32 v72, s67, v72"); a("v_add_u32 v73, s67, v73")
        a("v_cmp_gt_u32 vcc, 0x80, v6"); a("v_cndmask_b32 v72, v72, v6, vcc"); a("v_cmp_gt_u32 vcc, 0x80, v7"); a("v_cndmask_b32 v73, v73, v7, vcc")
        a("v_lshrrev_b32 v6, 5, v72"); a("v_add_u32 v72, v72, v6"); a("v_lshrrev_b32 v7, 5, v73"); a("v_add_u32 v73, v73, v7")
        a(f"v_lshl_add_u32 v{GI+e}, v72, 2, s64"); a(f"v_lshl_add_u32 v{GI+1+e}, v73, 2, s64")
    a("v_lshlrev_b32 v108, 4, v0"); a(f"v_add_u32 v108, {KR0}, v108")
def kgen(a,vq,dd,hooks={}):
    a("s_mov_b32 s77, 0x3fb8aa3b"); a("s_mov_b32 s78, 0xffff0000"); a("s_mov_b32 s79, 0x3e22f983")
    if dd==0: k_setup(a)
    for i in range(4): a(f"v_mov_b32 v{128+i}, 0")
    a("v_bfe_u32 v5, v0, 5, 1"); a(f"v_mul_u32_u24 v5, {KRB}, v5"); a("v_and_b32 v6, 31, v0"); a("v_lshl_add_u32 v5, v6, 4, v5"); a(f"v_add_u32 v5, {KR0+2*KRB*dd+4096}, v5")
    masked(a,"v_cmp_gt_u32 vcc, 64, v0",lambda: a("ds_write_b128 v5, v[128:131]"))
    a("s_waitcnt lgkmcnt(0)")
    a("s_lshl_b32 s3, s82, 16" if dd==0 else "s_and_b32 s3, s82, 0xffff0000")
    a("v_mov_b32 v33, s3"); a("v_mul_f32 v33, s77, v33"); a("v_exp_f32 v33, v33"); a("v_cvt_pk_bf16_f32 v33, v33, v33"); a("v_and_b32 v33, s78, v33"); a("v_add_f32 v34, v33, v33")
    A=38
    for i in range(12): a(f"v_mov_b32 v{A+i}, 0")
    def valu(n):
        P=208; q=n>>1; T=132+18*(n&3) if False else 132+22*(n&1)+0; D=33; o=[]
        T=120+22*(n&3) if False else [132,154,176,64][n&3]
        def unp(dst,src): o.append(f"v_and_b32 v{dst}, s78, v{src+q}" if n&1 else f"v_lshlrev_b32 v{dst}, 16, v{src+q}")
        unp(T,P); unp(T+1,P+4); unp(T+2,P+8); unp(T+3,P+12)
        o+=[f"v_mul_f32 v{T}, s77, v{T}", f"v_exp_f32 v{T}, v{T}", f"v_mul_f32 v{T+1}, v{T+1}, v{D}", f"v_mul_f32 v{T+2}, v{T+2}, v{D+1}",
            f"v_cvt_pk_bf16_f32 v{T}, v{T}, v{T}", f"v_and_b32 v{T}, s78, v{T}", f"v_mul_f32 v{T+3}, v{T+3}, v{D+1}", f"v_mul_f32 v{T}, v{T}, v{D}",
            f"v_mul_f32 v{T+1}, s79, v{T+1}", f"v_mul_f32 v{T}, s77, v{T}"]
        if PK:
            for k in (0,2): o+=[f"v_pk_mul_f32 v[{T+4+k}:{T+5+k}], v[{24+k}:{25+k}], v[{T}:{T+1}] op_sel:[0,0] op_sel_hi:[1,0] neg_lo:[0,1] neg_hi:[0,1]",
                                f"v_pk_mul_f32 v[{T+8+k}:{T+9+k}], v[{24+k}:{25+k}], v[{T}:{T+1}] op_sel:[0,1] op_sel_hi:[1,1]"]
        else:
            for k in range(4): o+=[f"v_mul_f32 v{T+4+k}, -v{T}, v{24+k}", f"v_mul_f32 v{T+8+k}, v{T+1}, v{24+k}"]
        for k in range(4): o+=[f"v_exp_f32 v{T+4+k}, v{T+4+k}", f"v_fract_f32 v{T+8+k}, v{T+8+k}"]
        for k in range(4): o+=[f"v_cos_f32 v{T+12+k}, v{T+8+k}", f"v_sin_f32 v{T+16+k}, v{T+8+k}"]
        if PK:
            for k in (0,2): o+=[f"v_pk_mul_f32 v[{T+12+k}:{T+13+k}], v[{T+12+k}:{T+13+k}], v[{T+4+k}:{T+5+k}]", f"v_pk_mul_f32 v[{T+16+k}:{T+17+k}], v[{T+16+k}:{T+17+k}], v[{T+4+k}:{T+5+k}]"]
        else:
            for k in range(4): o+=[f"v_mul_f32 v{T+12+k}, v{T+12+k}, v{T+4+k}", f"v_mul_f32 v{T+16+k}, v{T+16+k}, v{T+4+k}"]
        o+=[f"v_mul_f32 v{T+20}, v{T+2}, v{T+12}", f"v_mul_f32 v{T+21}, v{T+2}, v{T+16}", f"v_fma_f32 v{T+20}, -v{T+3}, v{T+16}, v{T+20}", f"v_fma_f32 v{T+21}, v{T+3}, v{T+12}, v{T+21}", f"v_sub_f32 v{T+21}, 0, v{T+21}"]
        return o
    def mfmas(n):
        T=[132,154,176,64][n&3]
        return [f"v_mfma_f32_16x16x4_f32 {R(A+4*tau)}, v{T+13+4*part+tau}, v{T+20+part}, {R(A+4*tau)}" for part in range(2) for tau in range(3)]
    vq.wait_for(a,lambda t:t==("P",dd))
    for i in range(16): a(f"v_mov_b32 v{208+i}, v{224+16*dd+i}")
    pend=[]
    for n in range(0,8,2):
        if n in hooks: hooks[n]()
        o=[x for pr in zip(valu(n),valu(n+1)) for x in pr]
        for k,ins in enumerate(o):
            a(ins)
            if pend and k%8==4: a(pend.pop(0))
        while pend: a(pend.pop(0))
        pend=mfmas(n)+mfmas(n+1)
    while pend: a(pend.pop(0))
    for i in range(12): a(f"ds_write_b32 v{50+i}, v{A+i}")
    a("s_waitcnt lgkmcnt(0)"); a("s_barrier")
    B0=132
    for e in range(8):
        for w in range(4): a(f"ds_read_b32 v{B0+4*e+w}, v{GI+e} offset:{3200*w}")
    a("s_waitcnt lgkmcnt(0)")
    for e in range(8):
        b=B0+4*e; a(f"v_add_f32 v{b}, v{b}, v{b+1}"); a(f"v_add_f32 v{b+2}, v{b+2}, v{b+3}"); a(f"v_add_f32 v{b}, v{b}, v{b+2}")
    O=110
    for p in range(4):
        x0=B0+8*p; x1=x0+4
        a(f"v_cvt_pk_bf16_f32 v{O+p}, v{x0}, v{x1}"); a(f"v_lshlrev_b32 v{O+8}, 16, v{O+p}"); a(f"v_and_b32 v{O+9}, s78, v{O+p}")
        a(f"v_sub_f32 v{O+8}, v{x0}, v{O+8}"); a(f"v_sub_f32 v{O+9}, v{x1}, v{O+9}"); a(f"v_cvt_pk_bf16_f32 v{O+4+p}, v{O+8}, v{O+9}")
    a(f"ds_write_b128 v108, {R(O)} offset:{2*KRB*dd}"); a(f"ds_write_b128 v108, {R(O+4)} offset:{2*KRB*dd+KRB}")
    a("s_waitcnt lgkmcnt(0)"); a("s_barrier")
def conv_loads(a,vq):
    a(f"s_mul_i32 s3, s2, {2*XNT_STRIDE}"); a(f"s_movk_i32 s66, {XNT_STRIDE}")
    a("v_lshlrev_b32 v5, 4, v0"); a("v_add_u32 v6, s3, v5"); a("v_add_u32 v7, 4096, v6")
    def body():
        for dd,b in ((0,176),(1,248)):
            for q in range(2): a(f"buffer_load_dwordx4 {R(b+4*q)}, v7, {S4(XNT)}, {'s66' if dd else '0'} offen offset:{16*q}{SC}")
    masked(a,"v_cmp_gt_u32 vcc, 2, v0",body)
    for dd,b in ((0,168),(1,240)):
        for q in range(2): a(f"buffer_load_dwordx4 {R(b+4*q)}, v6, {S4(XNT)}, {'s66' if dd else '0'} offen offset:{16*q}{SC}"); vq.issue(("U",dd))
def conv(a,vq,dd,st_):
    a("v_lshlrev_b32 v5, 4, v0"); a("v_add_u32 v10, 4096, v5")
    def copies(base,vaddr):
        for s in range(8):
            q=s>>1
            if s&1:
                for k in range(4): a(f"v_alignbit_b32 v{16+4*s+k}, v{base+q+k+1}, v{base+q+k}, 16")
                src=16+4*s
            elif q&1:
                for k in range(4): a(f"v_mov_b32 v{16+4*s+k}, v{base+q+k}")
                src=16+4*s
            else: src=base+q
            a(f"ds_write_b128 v{vaddr}, {R(src)} offset:{s*CSTR+16*COFF[s]}")
    a("v_add_u32 v6, 1, v1"); a("v_and_b32 v7, 7, v6"); a(f"v_mul_u32_u24 v8, {CSTR}, v7")
    pk=sum(c<<(4*i) for i,c in enumerate(COFF)); a(f"s_mov_b32 s67, {pk}")
    a("v_lshlrev_b32 v9, 2, v7"); a("v_lshrrev_b32 v9, v9, s67"); a("v_and_b32 v9, 15, v9"); a("v_lshl_add_u32 v8, v9, 4, v8")
    a("v_and_b32 v6, 0x18, v6"); a("v_lshl_add_u32 v6, v2, 3, v6"); a("v_lshl_add_u32 v8, v6, 1, v8")
    a("s_lshl_b32 s64, s68, 7"); a("v_add_u32 v11, s64, v8")
    a("v_lshlrev_b32 v6, 5, v1"); a("v_lshlrev_b32 v7, 4, v2"); a("v_sub_u32 v6, v7, v6"); a(f"s_add_u32 s64, s64, {KR0+2*KRB*dd+2*2032-64*56}"); a("v_add_u32 v12, s64, v6")
    vq.wait_for(a,lambda t:t==("U",dd))
    copies((168,240)[dd],5); masked(a,"v_cmp_gt_u32 vcc, 2, v0",lambda: copies((176,248)[dd],10))
    ACB=208 if True else 0
    a("s_waitcnt lgkmcnt(0)"); a("s_barrier"); st_(a,f"cv{dd}")
    acc=lambda C: R(208+4*C)
    for i in range(32): a(f"v_mov_b32 v{208+i}, 0")
    RA=lambda st,i: R(16+96*st+4*i); RH=lambda st,i: R(48+96*st+4*i); RL=lambda st,i: R(80+96*st+4*i)
    def loads(st,b):
        out=[]
        for i in range(8): out+=[f"ds_read_b128 {RA(st,i)}, v11 offset:{512*i+64*b}", f"ds_read_b128 {RH(st,i)}, v12 offset:{64*(b-8*i+56)}", f"ds_read_b128 {RL(st,i)}, v12 offset:{64*(b-8*i+56)+KRB}"]
        return out
    for l in loads(0,0): a(l)
    for b in range(2):
        nxt=loads(1,1) if b==0 else []
        a("s_waitcnt lgkmcnt(0)"); k=0
        for C in range(8):
            for ap in range(C+1):
                m=C-ap
                a(f"v_mfma_f32_16x16x32_bf16 {acc(C)}, {RA(b,ap)}, {RH(b,m)}, {acc(C)}"); a(f"v_mfma_f32_16x16x32_bf16 {acc(C)}, {RA(b,ap)}, {RL(b,m)}, {acc(C)}")
                if nxt and k>=4: a(nxt.pop(0))
                k+=1
        while nxt: a(nxt.pop(0))
    a("v_lshlrev_b32 v5, 4, v4"); a("s_mul_i32 s64, s68, 6144"); a(f"s_add_u32 s64, s64, {XCH}"); a("v_add_u32 v6, s64, v5")
    Le=lab("CXE"); a("s_nop 7")
    for w in range(4):
        Lw=lab("CXW"); a(f"s_cmp_lg_u32 s68, {w}"); a(f"s_cbranch_scc1 {Lw}")
        for C in range(8):
            if C>>1==w: continue
            a(f"ds_write_b128 v6, {acc(C)} offset:{1024*((C-2*w-2)%8)}")
        for i in range(8): a(f"v_mov_b32 v{16+i}, v{208+8*w+i}")
        a(f"s_branch {Le}"); a(f"{Lw}:")
    a(f"{Le}:"); a("s_waitcnt lgkmcnt(0)"); a("s_barrier")
    for k in range(3):
        a(f"s_sub_u32 s64, s68, {k+1}"); a("s_and_b32 s64, s64, 3"); a("s_mul_i32 s64, s64, 6144"); a(f"s_add_u32 s64, s64, {XCH}"); a("v_add_u32 v7, s64, v5")
        for c in range(2): a(f"ds_read_b128 {R(24+8*k+4*c)}, v7 offset:{1024*(2*k+c)}")
    a("s_lshl_b32 s64, s68, 10"); a("v_lshlrev_b32 v8, 5, v1"); a("v_lshl_add_u32 v8, v2, 3, v8"); a("v_add_u32 v8, s64, v8"); a("v_add_u32 v9, s64, v5")
    a("s_lshl_b32 s3, s2, 13"); a(f"s_add_u32 s3, s3, {4096*dd}"); a("s_add_u32 s3, s3, s64"); a("v_add_u32 v10, s3, v5")
    a("s_waitcnt lgkmcnt(0)")
    for c in range(2):
        for k in range(4):
            b=16+4*c+k; a(f"v_add_f32 v{b}, v{b}, v{b+8}"); a(f"v_add_f32 v{b+16}, v{b+16}, v{b+24}"); a(f"v_add_f32 v{b}, v{b}, v{b+16}")
        a(f"v_cvt_pk_bf16_f32 v{48+2*c}, v{16+4*c}, v{17+4*c}"); a(f"v_cvt_pk_bf16_f32 v{49+2*c}, v{18+4*c}, v{19+4*c}")
        a(f"ds_write_b64 v8, {R(48+2*c,2)} offset:{512*c}")
    a("s_waitcnt lgkmcnt(0)"); a("ds_read_b128 v[52:55], v9"); a("s_waitcnt lgkmcnt(0)")
    a(f"buffer_store_dwordx4 v[52:55], v10, {S4(YT)}, 0 offen{SC}"); vq.issue(("S",2))
    a("s_barrier")
def role_s(a,st):
    vq=VmQ()
    s_loads(a,vq)
    SS=lambda i: a(f"s_memrealtime s[{84+2*i}:{85+2*i}]") if STAMPS else None
    SS(0); kgen(a,vq,0,{6:lambda:s_warm(a)}); SS(1)
    kgen(a,vq,1,{2:lambda:token_issue(a,vq)}); SS(2)
    token_get(a,vq); xn_poll_addr(a,16,3); poll_issue(a,vq,16,20,("PX",0),4); poll_check(a,vq,16,20,("PX",0),4); SS(3)
    conv_loads(a,vq); s_warm_wd(a)
    if os.environ.get("HINT","0")=="1":
        a("s_lshl_b32 s64, s2, 2"); a(f"s_add_u32 s64, s64, {4*8192}"); a("v_mov_b32 v16, s64"); poll_issue(a,vq,16,20,("PG",0)); poll_check(a,vq,16,20,("PG",0))
    conv(a,vq,0,lambda a,n:None); SS(4)
    conv(a,vq,1,lambda a,n:None); SS(5)
    signal(a,vq,2,("S",2)); SS(6)
    if STAMPS:
        a("s_load_dwordx2 s[4:5], s[0:1], 104"); a("s_waitcnt lgkmcnt(0) vmcnt(0)"); srd(a,52,4,5,1<<20,add=(48<<20)+65536)
        a("v_lshrrev_b32 v1, 6, v0"); a("s_lshl_b32 s3, s2, 8"); a("v_lshlrev_b32 v1, 6, v1"); a("v_add_u32 v1, s3, v1")
        for i in range(7): a(f"v_mov_b32 v2, s{84+2*i}"); a(f"buffer_store_dword v2, v1, s[52:55], 0 offen offset:{4*i}")
NAME=m8.NAME
def build():
    a=Asm(); st=St()
    a(f"{NAME}:"); a("s_cmp_ge_u32 s2, 512"); a("s_cbranch_scc1 K_END"); st(a,"start")
    setup(a)
    a("s_cmp_ge_u32 s81, 256"); a("s_cbranch_scc1 ROLE_S")
    role_f(a,st); st.dump(a); a("s_endpgm")
    a("ROLE_S:")
    if os.environ.get("NOS")=="1":
        vq=VmQ(); s_warm(a); s_warm_wd(a); token_issue(a,vq); a("s_sleep 100"); token_get(a,vq); signal(a,vq,2,("S",2))
    else: role_s(a,st)
    a("K_END:"); a("s_endpgm")
    return a.render()
if __name__=="__main__":
    HDR=open("parallel_sum__ssm_conv_s4d__swiglu_ffn__prompt.s.ref").read().split("; Override launch")[0]
    s=HDR+f"; @launch grid=(512,1,1) block=(256,1,1) lds={LDS}\n"+'.amdgcn_target "amdgcn-amd-amdhsa--gfx950"\n.text\n'+f".globl {NAME}\n.p2align 8\n.type {NAME},@function\n"+build()
    s+=f'''.section .rodata,"a"
.p2align 6
.amdhsa_kernel {NAME}
  .amdhsa_next_free_vgpr 256
  .amdhsa_next_free_sgpr 102
  .amdhsa_accum_offset 256
  .amdhsa_group_segment_fixed_size 0
  .amdhsa_kernarg_size 112
  .amdhsa_user_sgpr_count 2
  .amdhsa_user_sgpr_kernarg_segment_ptr 1
  .amdhsa_system_sgpr_workgroup_id_x 1
.end_amdhsa_kernel
'''
    open(sys.argv[1],"w").write(s)
```

```python
import os, sys
from asmlib import Asm
import m8
from m8 import VmQ, srd, R, S4, lab, masked, emit_g, X,XN,XNT,HH,YT,WG,WU,WD,OUT,DSK,DBG,FL, WS_XNT,WS_YT,WS_H,WS_FL,XNT_STRIDE,XNT_SIZE,GSTR,MATB,STG,KRB,COFF,CSTR,UB,PHI,SC
STAMPS=m8.STAMPS; SKIP=m8.SKIP
LDS=81920
PK=os.environ.get('PK','0')=='1'
NSTB=3; ARING=NSTB*STG; ASLOT=16384; NSTA=2; LNT=ARING+ASLOT
class St(m8.St):
    def dump(s,a):
        if not STAMPS: return
        a("s_load_dwordx2 s[4:5], s[0:1], 104"); a("s_waitcnt lgkmcnt(0) vmcnt(0)")
        srd(a,52,4,5,1<<20,add=(48<<20))
        a("v_lshrrev_b32 v1, 6, v0"); a("s_lshl_b32 s3, s2, 8"); a("v_lshlrev_b32 v1, 6, v1"); a("v_add_u32 v1, s3, v1")
        for i in range(s.n): a(f"v_mov_b32 v2, s{84+2*i}"); a(f"buffer_store_dword v2, v1, s[52:55], 0 offen offset:{4*i}")
        print("stamps:",s.names)
def setup(a):
    a("s_load_dwordx16 s[68:83], s[0:1], 0"); a("s_load_dwordx8 s[52:59], s[0:1], 64"); a("s_load_dwordx4 s[60:63], s[0:1], 96")
    a("v_and_b32 v1, 15, v0"); a("v_bfe_u32 v2, v0, 4, 2"); a("v_lshrrev_b32 v3, 6, v0"); a("v_and_b32 v4, 63, v0")
    a("s_waitcnt lgkmcnt(0)")
    srd(a,X,68,69,2<<20); srd(a,XN,62,63,2<<20); srd(a,XNT,62,63,XNT_SIZE,add=WS_XNT); srd(a,HH,62,63,2048*3584,add=WS_H)
    srd(a,YT,62,63,2<<20,add=WS_YT); srd(a,WG,52,53,512*3584); srd(a,WU,54,55,512*3584); srd(a,WD,56,57,1792*1024)
    srd(a,OUT,58,59,2<<20); srd(a,DSK,80,81,1024); srd(a,DBG,60,61,256); srd(a,FL,62,63,65536,add=WS_FL)
    a("v_readfirstlane_b32 s68, v3"); a("s_mov_b32 s81, s2"); a("s_and_b32 s2, s2, 255")
token_publish=m8.token_publish; token_issue=m8.token_issue; token_get=m8.token_get; poll_issue=m8.poll_issue; poll_check=m8.poll_check
def signal(a,vq,phase,tag,t=5):
    vq.wait_for(a,lambda x:x==tag); a("s_barrier")
    a(f"v_mov_b32 v{t}, s83"); a("s_lshl_b32 s64, s2, 2"); a(f"s_add_u32 s64, s64, {phase*8192}"); a(f"v_lshlrev_b32 v{t+1}, 10, v0"); a(f"v_add_u32 v{t+1}, s64, v{t+1}")
    masked(a,"v_cmp_gt_u32 vcc, 8, v0",lambda: a(f"buffer_store_dword v{t}, v{t+1}, {S4(FL)}, 0 offen sc1"))
def xn_poll_addr(a,v,ph=0): a("s_and_b32 s64, s2, 7"); a("s_lshl_b32 s64, s64, 10"); a(f"s_add_u32 s64, s64, {ph*8192}"); a(f"v_lshlrev_b32 v{v}, 4, v4"); a(f"v_add_u32 v{v}, s64, v{v}")
def tile_ids(a):
    a("s_and_b32 s64, s2, 7"); a("s_lshr_b32 s65, s2, 3")
    a("s_and_b32 s70, s64, 1"); a("s_lshl_b32 s70, s70, 3"); a("s_and_b32 s66, s65, 7"); a("s_add_u32 s70, s70, s66")
    a("s_lshr_b32 s71, s64, 1"); a("s_lshl_b32 s71, s71, 2"); a("s_lshr_b32 s66, s65, 3"); a("s_add_u32 s71, s71, s66")
def f_p0(a,vq):
    m8.LNT=LNT
    m8.p0_addr(a); m8.p0_loads(a,vq)
def g1_setup(a):
    tile_ids(a)
    a("v_mul_u32_u24 v8, 0x2493, v4"); a("v_lshrrev_b32 v8, 17, v8"); a("v_mul_u32_u24 v9, 14, v8"); a("v_sub_u32 v9, v4, v9")
    a("v_mul_u32_u24 v8, 3584, v8"); a("v_lshl_add_u32 v8, v9, 4, v8"); a("s_mul_i32 s66, s71, 224"); a("v_add_u32 v10, s66, v8")
    a("s_mul_i32 s72, s68, 28672"); a(f"s_mul_i32 s73, s68, {2*GSTR}")
    a(f"v_mul_u32_u24 v5, {2*GSTR}, v2"); a("v_lshrrev_b32 v6, 2, v1"); a("v_mul_u32_u24 v6, 224, v6"); a("v_and_b32 v7, 3, v0"); a("v_lshl_add_u32 v6, v7, 3, v6"); a("v_add_u32 v11, v5, v6")
    a("v_lshrrev_b32 v5, 3, v4"); a("v_and_b32 v6, 7, v4"); a("s_lshl_b32 s66, s70, 7"); a("s_lshl_b32 s67, s68, 5"); a("s_add_u32 s66, s66, s67")
    a("v_add_u32 v7, s66, v5"); a("v_lshlrev_b32 v7, 10, v7"); a("v_xor_b32 v8, v6, v2"); a("v_lshl_add_u32 v12, v8, 4, v7"); a("v_xor_b32 v8, 4, v8"); a("v_lshl_add_u32 v13, v8, 4, v7")
    a("s_lshl_b32 s74, s68, 12"); a(f"s_add_u32 s74, s74, {ARING}")
    a("v_lshrrev_b32 v7, 1, v1"); a("v_xor_b32 v8, v2, v7"); a("v_lshlrev_b32 v9, 7, v1"); a("v_add_u32 v9, s74, v9")
    a("v_lshl_add_u32 v14, v8, 4, v9"); a("v_xor_b32 v8, 4, v8"); a("v_lshl_add_u32 v15, v8, 4, v9")
def bdma_l(s):
    return [([f"s_add_u32 s66, s72, {s*114688+gi*14336}", f"s_add_u32 m0, s73, {(s%NSTB)*STG+mat*MATB+gi*GSTR}", "s_mov_b32 exec_hi, 0x00ffffff",
              f"buffer_load_dwordx4 v10, {S4((WG,WU)[mat])}, s66 offen lds", "s_mov_b32 exec_hi, -1"],("B",s)) for mat in range(2) for gi in range(2)]
def adma_l(c):
    return [([f"s_mov_b32 s66, {q*8192+c*128}", f"s_add_u32 m0, s74, {(c%NSTA)*ASLOT+q*1024}", f"buffer_load_dwordx4 v{12+(q&1)}, {S4(XN)}, s66 offen{SC} lds"],("A",c)) for q in range(4)]
BF=lambda st,mat,j: 16+56*st+28*mat+4*j
AC=lambda rt,mat,j: 128+56*rt+28*mat+4*j
AF=lambda st,rt: 240+8*st+4*rt
def g1_reads(s):
    st=s&1; out=[f"ds_read_b128 {R(AF(st,rt))}, v{14+(s&1)} offset:{((s>>1)%NSTA)*ASLOT+rt*2048}" for rt in range(2)]
    for j in range(7):
        for mat in range(2):
            for h in range(2): out.append(f"ds_read_b64_tr_b16 {R(BF(st,mat,j)+2*h,2)}, v11 offset:{(s%NSTB)*STG+mat*MATB+h*GSTR+32*j}")
    return out
def g1_main(a,vq,st_):
    for i in range(112): a(f"v_mov_b32 v{128+i}, 0")
    vq.wait_for(a,lambda t:t in(("B",0),("A",0))); a("s_barrier"); st_(a,"g1_loop")
    for l in g1_reads(0): a(l)
    for s in range(16):
        st=s&1
        if s==8: st_(a,"g1_s8")
        vq.wait_for(a,lambda t:t==("B",s+1) or t==("A",(s+1)>>1)); a("s_waitcnt lgkmcnt(0)"); a("s_barrier")
        dm=[]
        if s&1 and (s>>1)+NSTA<8: dm+=adma_l((s>>1)+NSTA)
        if s+NSTB<16: dm+=bdma_l(s+NSTB)
        nxt=g1_reads(s+1) if s<15 else []; k=0
        for j in range(7):
            for mat in range(2):
                for rt in range(2):
                    d=AC(rt,mat,j)
                    a(f"v_mfma_f32_16x16x32_bf16 {R(d)}, {R(BF(st,mat,j))}, {R(AF(st,rt))}, {R(d)}")
                    if nxt: a(nxt.pop(0))
                    if nxt and j==0: a(nxt.pop(0))
                    if dm and k%3==1: emit_g(a,vq,dm.pop(0))
                    k+=1
        while dm: emit_g(a,vq,dm.pop(0))
def g1_epilogue(a,vq):
    a("s_mov_b32 s66, 0xffff0000"); a("s_mov_b32 s67, 0xbfb8aa3b")
    a("v_mul_u32_u24 v5, 240, v1"); a("v_lshl_add_u32 v5, v2, 3, v5"); a("v_add_u32 v5, s74, v5")
    a("s_lshl_b32 s64, s70, 7"); a("s_lshl_b32 s65, s68, 5"); a("s_add_u32 s64, s64, s65"); a("s_mul_i32 s64, s64, 3584"); a("s_mul_i32 s65, s71, 224"); a("s_add_u32 s75, s64, s65"); a("s_add_u32 s76, s75, 57344")
    for i in range(4):
        a(f"v_add_u32 v6, {64*i}, v4"); a("v_mul_u32_u24 v7, 0x2493, v6"); a("v_lshrrev_b32 v7, 17, v7"); a("v_mul_u32_u24 v9, 14, v7"); a("v_sub_u32 v9, v6, v9")
        a("v_mul_u32_u24 v6, 3584, v7"); a(f"v_lshl_add_u32 v{104+i}, v9, 4, v6")
        a("v_mul_u32_u24 v6, 240, v7"); a("v_lshl_add_u32 v6, v9, 4, v6"); a(f"v_add_u32 v{108+i}, s74, v6")
    for rt in range(2):
        for j in range(7):
            g=AC(rt,0,j); u=AC(rt,1,j); T=16+16*(j&1)
            a(f"v_cvt_pk_bf16_f32 v{T}, v{g}, v{g+1}"); a(f"v_cvt_pk_bf16_f32 v{T+1}, v{g+2}, v{g+3}")
            a(f"v_lshlrev_b32 v{T+2}, 16, v{T}"); a(f"v_and_b32 v{T+3}, s66, v{T}"); a(f"v_lshlrev_b32 v{T+4}, 16, v{T+1}"); a(f"v_and_b32 v{T+5}, s66, v{T+1}")
            for k in range(4): a(f"v_mul_f32 v{T+6+k}, s67, v{T+2+k}")
            for k in range(4): a(f"v_exp_f32 v{T+6+k}, v{T+6+k}")
            a(f"v_cvt_pk_bf16_f32 v{T}, v{u}, v{u+1}"); a(f"v_cvt_pk_bf16_f32 v{T+1}, v{u+2}, v{u+3}")
            a(f"v_lshlrev_b32 v{T+10}, 16, v{T}"); a(f"v_and_b32 v{T+11}, s66, v{T}"); a(f"v_lshlrev_b32 v{T+12}, 16, v{T+1}"); a(f"v_and_b32 v{T+13}, s66, v{T+1}")
            for k in range(4): a(f"v_add_f32 v{T+6+k}, 1.0, v{T+6+k}")
            for k in range(4): a(f"v_rcp_f32 v{T+6+k}, v{T+6+k}")
            for k in range(4): a(f"v_mul_f32 v{T+2+k}, v{T+2+k}, v{T+6+k}")
            a(f"v_cvt_pk_bf16_f32 v{T}, v{T+2}, v{T+3}"); a(f"v_cvt_pk_bf16_f32 v{T+1}, v{T+4}, v{T+5}")
            a(f"v_lshlrev_b32 v{T+2}, 16, v{T}"); a(f"v_and_b32 v{T+3}, s66, v{T}"); a(f"v_lshlrev_b32 v{T+4}, 16, v{T+1}"); a(f"v_and_b32 v{T+5}, s66, v{T+1}")
            for k in range(4): a(f"v_mul_f32 v{T+2+k}, v{T+2+k}, v{T+10+k}")
            a(f"v_cvt_pk_bf16_f32 v{T+14}, v{T+2}, v{T+3}"); a(f"v_cvt_pk_bf16_f32 v{T+15}, v{T+4}, v{T+5}")
            a(f"ds_write_b64 v5, {R(T+14,2)} offset:{rt*ASLOT+32*j}")
        a("s_waitcnt lgkmcnt(0)")
        for q in range(4):
            if q==3: a("s_mov_b32 exec_hi, 0")
            a(f"ds_read_b128 {R(112+4*q)}, v{108+q} offset:{rt*ASLOT}")
        a("s_mov_b32 exec_hi, -1")
        for q in range(4):
            a(f"s_waitcnt lgkmcnt({3-q})")
            if q==3: a("s_mov_b32 exec_hi, 0")
            a(f"buffer_store_dwordx4 {R(112+4*q)}, v{104+q}, {S4(HH)}, s{75+rt} offen{SC}"); vq.issue(("S",1))
        a("s_mov_b32 exec_hi, -1")
EPX=65536; NSL=4
def g2_setup(a):
    a("s_and_b32 s64, s2, 7"); a("s_lshr_b32 s65, s2, 3"); a("s_lshl_b32 s70, s64, 2"); a("s_lshr_b32 s66, s65, 3"); a("s_add_u32 s70, s70, s66"); a("s_and_b32 s71, s65, 7")
    a("s_lshl_b32 s72, s70, 6"); a("s_lshl_b32 s73, s71, 7")
    a("s_lshl_b32 s75, s68, 11")
    a("s_and_b32 s77, s68, 1"); a("s_lshr_b32 s78, s68, 1")
    a("v_lshrrev_b32 v5, 3, v4"); a("v_and_b32 v6, 7, v4"); a("s_lshl_b32 s74, s68, 4")
    a("s_add_u32 s66, s72, s74"); a("v_add_u32 v7, s66, v5"); a("v_mul_u32_u24 v8, 3584, v7")
    a("v_xor_b32 v9, v6, v2"); a("v_lshl_add_u32 v10, v9, 4, v8"); a("v_xor_b32 v9, 4, v9"); a("v_lshl_add_u32 v11, v9, 4, v8"); a("v_add_u32 v11, 28672, v11")
    a("v_lshlrev_b32 v7, 10, v7"); a("v_lshl_add_u32 v7, v6, 4, v7"); a("v_add_u32 v14, s73, v7")
    a("v_add_u32 v7, s74, v5"); a("v_lshlrev_b32 v7, 10, v7"); a("v_add_u32 v7, s73, v7")
    a("v_and_b32 v8, 1, v2"); a("v_lshlrev_b32 v8, 1, v8"); a("v_xor_b32 v8, v6, v8"); a("v_lshl_add_u32 v12, v8, 4, v7"); a("v_xor_b32 v8, 4, v8"); a("v_lshl_add_u32 v13, v8, 4, v7"); a("v_add_u32 v13, 8192, v13")
    a("s_lshl_b32 s66, s71, 6"); a("s_add_u32 s66, s66, s74"); a("v_add_u32 v7, s66, v5"); a("v_lshlrev_b32 v7, 12, v7"); a("v_lshl_add_u32 v7, v6, 4, v7"); a("s_lshl_b32 s66, s72, 1"); a("v_add_u32 v15, s66, v7")
    a("s_lshl_b32 s66, s77, 12"); a("v_lshrrev_b32 v7, 1, v1"); a("v_xor_b32 v8, v2, v7"); a("v_lshlrev_b32 v9, 7, v1"); a("v_add_u32 v9, s66, v9"); a("v_lshl_add_u32 v16, v8, 4, v9"); a("v_xor_b32 v8, 4, v8"); a("v_lshl_add_u32 v17, v8, 4, v9")
    a("v_lshrrev_b32 v7, 2, v1"); a("v_lshl_add_u32 v8, v2, 3, v7"); a("v_lshlrev_b32 v8, 7, v8"); a("v_and_b32 v9, 1, v0"); a("v_lshl_add_u32 v8, v9, 3, v8")
    a("v_bfe_u32 v9, v1, 3, 1"); a("v_lshlrev_b32 v9, 1, v9"); a("v_and_b32 v7, 1, v2"); a("v_lshl_add_u32 v9, v7, 2, v9"); a("v_bfe_u32 v7, v0, 1, 1"); a("v_xor_b32 v9, v9, v7")
    a("s_lshl_b32 s66, s78, 2"); a("v_xor_b32 v9, s66, v9")
    for jj in range(2): a(f"v_xor_b32 v7, {2*jj}, v9"); a(f"v_lshl_add_u32 v{18+jj}, v7, 4, v8")
    a(f"s_add_u32 s76, s75, {EPX}")
def g2_dma(c,part):
    out=[]
    for i in range(2):
        if part&1: out.append(([f"s_movk_i32 s66, {c*128}", f"s_add_u32 m0, s75, {(c%NSL)*16384+i*1024}", f"buffer_load_dwordx4 v{10+i}, {S4(HH)}, s66 offen{SC} lds"],("C",c)))
        if part&2: out.append(([f"s_mov_b32 s66, {c*65536}", f"s_add_u32 m0, s75, {(c%NSL)*16384+8192+i*1024}", f"buffer_load_dwordx4 v{12+i}, {S4(WD)}, s66 offen lds"],("C",c)))
    return out
def g2_pre(a,vq):
    for c in range(NSL):
        for g in g2_dma(c,2): emit_g(a,vq,g)
    for ti,(sr,sc) in enumerate(((X,""),(XN,SC))):
        for q in range(2):
            a(f"s_mov_b32 s66, {q*8192}"); a(f"s_add_u32 m0, s76, {ti*8192+q*1024}"); a(f"buffer_load_dwordx4 v14, {S4(sr)}, s66 offen{sc} lds"); vq.issue(("E",0))
    a("s_lshl_b32 s66, s78, 6"); a("s_add_u32 s66, s66, s73"); a("v_lshlrev_b32 v7, 3, v2"); a("v_add_u32 v7, s66, v7")
    for j in range(2): a(f"buffer_load_dwordx2 {R(24+2*j,2)}, v7, {S4(DSK)}, 0 offen offset:{32*j}"); vq.issue(("E",0))
def g2(a,vq,st_):
    for c in range(NSL):
        for g in g2_dma(c,1): emit_g(a,vq,g)
    ACC=lambda j,t: 64+8*j+4*t; HF=lambda st,ks,t: 96+32*st+8*ks+4*t; WF=lambda st,ks,j: 112+32*st+8*ks+4*j
    for i in range(16): a(f"v_mov_b32 v{64+i}, 0")
    NC=28
    def reads(c):
        st=c&1; bo=(c%NSL)*16384; out=[]
        for ks in range(2):
            for t in range(2):
                out.append(f"ds_read_b128 {R(HF(st,ks,t))}, v{16+ks} offset:{bo+t*2048}")
                for h in range(2): out.append(f"ds_read_b64_tr_b16 {R(WF(st,ks,t)+2*h,2)}, v{18+t} offset:{bo+8192+ks*4096+h*512}")
        return out
    vq.wait_for(a,lambda t:t==("C",0)); a("s_barrier"); st_(a,"g2_loop")
    for l in reads(0): a(l)
    for c in range(NC):
        st=c&1
        if c==20:
            a("s_and_b32 s64, s2, 7"); a("s_lshl_b32 s64, s64, 10"); a("s_lshl_b32 s65, s71, 7"); a("s_add_u32 s64, s64, s65"); a(f"s_add_u32 s64, s64, {2*8192}")
            a("v_and_b32 v22, 31, v4"); a("v_lshlrev_b32 v22, 2, v22"); a("v_add_u32 v22, s64, v22"); poll_issue(a,vq,22,23,("PY",0))
        vq.wait_for(a,lambda t:t==("C",c+1)); a("s_waitcnt lgkmcnt(0)")
        if c==25: poll_check(a,vq,22,23,("PY",0))
        else: a("s_barrier")
        dm=g2_dma(c+NSL,3) if c+NSL<NC else []
        if c==25: dm=[([f"s_mov_b32 s66, {q*32768}", f"s_add_u32 m0, s75, {(25%NSL)*16384+q*1024}", f"buffer_load_dwordx4 v15, {S4(YT)}, s66 offen{SC} lds"],("E",0)) for q in range(2)]
        nxt=reads(c+1) if c+1<NC else []
        for ks in range(2):
            for j in range(2):
                for t in range(2):
                    d=ACC(j,t); a(f"v_mfma_f32_16x16x32_bf16 {R(d)}, {R(WF(st,ks,j))}, {R(HF(st,ks,t))}, {R(d)}")
                    if nxt: a(nxt.pop(0))
                    if nxt and ks==0: a(nxt.pop(0))
                    if dm and t: emit_g(a,vq,dm.pop(0))
        while nxt: a(nxt.pop(0))
    st_(a,"g2_epi")
    vq.drain(a); a("s_barrier")
    a("s_lshl_b32 s66, s77, 12"); a("s_lshl_b32 s65, s78, 6"); a("s_add_u32 s66, s66, s65"); a(f"s_add_u32 s66, s66, {EPX}")
    a("v_lshlrev_b32 v5, 7, v1"); a("v_lshl_add_u32 v5, v2, 3, v5"); a("v_add_u32 v5, s66, v5")
    for t in range(2):
        for j in range(2): a(f"ds_read_b64 {R(128+4*t+2*j,2)}, v5 offset:{2048*t+32*j}"); a(f"ds_read_b64 {R(136+4*t+2*j,2)}, v5 offset:{8192+2048*t+32*j}")
    a("v_lshrrev_b32 v6, 2, v1"); a("v_lshl_add_u32 v6, v2, 2, v6"); a("v_lshlrev_b32 v6, 7, v6"); a("v_and_b32 v9, 3, v0"); a("v_lshl_add_u32 v6, v9, 3, v6")
    a("s_lshl_b32 s66, s78, 12"); a("s_lshl_b32 s65, s77, 6"); a("s_add_u32 s66, s66, s65"); a(f"s_add_u32 s66, s66, {(25%NSL)*16384}"); a("v_add_u32 v6, s66, v6")
    for t in range(2):
        for j in range(2): a(f"ds_read_b64_tr_b16 {R(144+4*t+2*j,2)}, v6 offset:{2048*j+32*t}")
    a("s_mov_b32 s67, 0xffff0000"); a("s_waitcnt lgkmcnt(0)")
    for t in range(2):
        for j in range(2):
            for p in range(2):
                b=ACC(j,t)+2*p; k=4*t+2*j+p; Xr=128+k; XNr=136+k; Y=144+k; D=24+2*j+p
                a(f"v_cvt_pk_bf16_f32 v210, v{b}, v{b+1}")
                a(f"v_lshlrev_b32 v211, 16, v{XNr}"); a(f"v_and_b32 v212, s67, v{XNr}"); a(f"v_lshlrev_b32 v213, 16, v{D}"); a(f"v_and_b32 v214, s67, v{D}")
                a("v_mul_f32 v211, v211, v213"); a("v_mul_f32 v212, v212, v214"); a("v_cvt_pk_bf16_f32 v211, v211, v212")
                for src in (Y,Xr):
                    a("v_lshlrev_b32 v212, 16, v211"); a("v_and_b32 v211, s67, v211"); a(f"v_lshlrev_b32 v213, 16, v{src}"); a(f"v_and_b32 v214, s67, v{src}")
                    a("v_add_f32 v212, v213, v212"); a("v_add_f32 v211, v214, v211"); a("v_cvt_pk_bf16_f32 v211, v212, v211")
                a("v_lshlrev_b32 v212, 16, v211"); a("v_and_b32 v211, s67, v211"); a("v_lshlrev_b32 v213, 16, v210"); a("v_and_b32 v214, s67, v210")
                a("v_add_f32 v212, v212, v213"); a("v_add_f32 v211, v211, v214"); a(f"v_cvt_pk_bf16_f32 v{152+k}, v212, v211")
            a(f"ds_write_b64 v5, {R(152+4*t+2*j,2)} offset:{2048*t+32*j}")
    a("v_lshlrev_b32 v7, 4, v4"); a("v_add_u32 v7, s76, v7"); a("s_waitcnt lgkmcnt(0)"); a("s_barrier")
    a("ds_read_b128 v[64:67], v7"); a("ds_read_b128 v[68:71], v7 offset:1024"); a("s_movk_i32 s66, 0x2000"); a("s_waitcnt lgkmcnt(0)")
    a(f"buffer_store_dwordx4 v[64:67], v14, {S4(OUT)}, 0 offen"); a(f"buffer_store_dwordx4 v[68:71], v14, {S4(OUT)}, s66 offen")
def role_f(a,st):
    vq=VmQ(); PR=os.environ.get("PRIO","3"); a(f"s_setprio {PR[0]}")
    token_publish(a); f_p0(a,vq); g1_setup(a)
    m8.LNT=LNT
    if os.environ.get("TOKE","1")=="1":
        vq.wait_for(a,lambda t:t==("X",1)); token_issue(a,vq); m8.p0_compute(a,vq)
    else: m8.p0_compute(a,vq); token_issue(a,vq)
    st(a,"p0_end")
    token_get(a,vq); signal(a,vq,0,("S",0)); st(a,"sig0")
    for s in range(NSTB):
        for g in bdma_l(s): emit_g(a,vq,g)
    signal(a,vq,3,("S",9))
    a("s_and_b32 s64, s2, 7"); a("s_lshl_b32 s64, s64, 10"); a("s_lshl_b32 s65, s70, 6"); a("s_add_u32 s64, s64, s65"); a("v_and_b32 v16, 3, v4"); a("v_lshlrev_b32 v16, 4, v16"); a("v_add_u32 v16, s64, v16")
    poll_issue(a,vq,16,20,("PX",0),4); poll_check(a,vq,16,20,("PX",0),4); st(a,"pc0")
    for c in range(NSTA):
        for g in adma_l(c): emit_g(a,vq,g)
    if os.environ.get("TOUCH","0")=="1":
        a("v_mul_u32_u24 v5, 0x2aab, v0"); a("v_lshrrev_b32 v5, 16, v5"); a("v_mul_u32_u24 v6, 6, v5"); a("v_sub_u32 v6, v0, v6")
        a("s_and_b32 s64, s71, 3"); a("s_lshl_b32 s64, s64, 5"); a("s_lshl_b32 s65, s70, 7"); a("s_add_u32 s64, s64, s65")
        a("v_add_u32 v5, s64, v5"); a("v_lshlrev_b32 v5, 10, v5"); a("v_lshl_add_u32 v5, v6, 7, v5"); a("v_add_u32 v7, 256, v5")
        masked(a,"v_cmp_gt_u32 vcc, 192, v0",lambda: a(f"buffer_load_dword v9, v7, {S4(XN)}, 0 offen{SC}"))
    if len(PR)>1: a(f"s_setprio {PR[1]}")
    g1_main(a,vq,st); st(a,"g1_epi")
    if os.environ.get("HINT","0")!="0":
        a("v_mov_b32 v5, s83"); a("s_lshl_b32 s64, s2, 2"); a(f"s_add_u32 s64, s64, {4*8192}"); a("v_mov_b32 v6, s64")
        masked(a,"v_cmp_eq_u32 vcc, 0, v0",lambda: a(f"buffer_store_dword v5, v6, {S4(FL)}, 0 offen sc1"))
    if len(PR)>2: a(f"s_setprio {PR[2]}")
    g1_epilogue(a,vq)
    signal(a,vq,1,("S",1)); st(a,"sigH")
    g2_setup(a); g2_pre(a,vq)
    a("s_lshr_b32 s64, s70, 1")
    a("s_and_b32 s65, s64, 7"); a("s_lshl_b32 s65, s65, 3"); a("s_lshr_b32 s64, s64, 3"); a("s_add_u32 s64, s64, s65"); a("s_lshl_b32 s64, s64, 2")
    a("s_and_b32 s65, s2, 7"); a("s_lshl_b32 s65, s65, 10"); a("s_add_u32 s64, s64, s65"); a("s_add_u32 s64, s64, 8192")
    a("v_bfe_u32 v212, v4, 2, 2"); a("v_lshlrev_b32 v212, 8, v212"); a("v_and_b32 v210, 3, v4"); a("v_lshl_add_u32 v210, v210, 3, v212"); a("v_add_u32 v210, s64, v210")
    a("s_sleep 16"); poll_issue(a,vq,210,211,("PH",0)); poll_check(a,vq,210,211,("PH",0)); st(a,"g2_start")
    if len(PR)>3: a(f"s_setprio {PR[3]}")
    g2(a,vq,st); st(a,"end")
KR0=UB; KTAB=UB+4*KRB; XCH=KTAB
def s_warm(a):
    tile_ids(a)
    a("v_mul_u32_u24 v120, 0x5556, v0"); a("v_lshrrev_b32 v120, 16, v120"); a("v_mul_u32_u24 v121, 3, v120"); a("v_sub_u32 v121, v0, v121")
    a("s_and_b32 s64, s70, 7"); a("s_mul_i32 s64, s64, 52"); a("s_add_u32 s64, s64, 96")
    a("v_add_u32 v120, s64, v120"); a("v_mul_u32_u24 v120, 3584, v120"); a("v_mul_u32_u24 v121, 110, v121"); a("v_and_b32 v121, 0xfffffffc, v121")
    a("s_mul_i32 s64, s71, 224"); a("v_add3_u32 v120, v120, v121, s64")
    def body(): a(f"buffer_load_dword v124, v120, {S4(WG)}, 0 offen"); a(f"buffer_load_dword v125, v120, {S4(WU)}, 0 offen")
    masked(a,"v_cmp_gt_u32 vcc, 156, v0",body)
def s_warm_wd(a):
    a("s_lshr_b32 s64, s2, 6"); a("s_mul_i32 s64, s64, 448"); a("s_lshl_b32 s64, s64, 10")
    a("s_lshr_b32 s65, s2, 3"); a("s_and_b32 s65, s65, 7"); a("s_lshl_b32 s65, s65, 7"); a("s_add_u32 s64, s64, s65")
    a("v_lshlrev_b32 v121, 10, v0"); a("v_add_u32 v121, s64, v121"); a("s_mov_b32 s66, 0x40000")
    a(f"buffer_load_dword v13, v121, {S4(WD)}, 0 offen")
    masked(a,"v_cmp_gt_u32 vcc, 192, v0",lambda: a(f"buffer_load_dword v14, v121, {S4(WD)}, s66 offen"))
def s_loads(a,vq):
    srd(a,52,70,71,131072); srd(a,56,72,73,131072); srd(a,60,74,75,131072); srd(a,64,76,77,131072)
    a("v_and_b32 v7, 31, v4"); a("v_lshl_add_u32 v7, v3, 5, v7"); a("v_lshlrev_b32 v7, 1, v7"); a("s_lshl_b32 s3, s2, 9"); a("v_add_u32 v7, s3, v7")
    for dd in range(2):
        for k in range(4): a(f"buffer_load_ushort v{240+4*dd+k}, v7, {S4(52+4*k)}, 0 offen offset:{256*dd}"); vq.issue(("P",dd))
    a("s_lshl_b32 s3, s2, 2"); a("s_load_dword s82, s[78:79], s3")
GI=100
def k_setup(a):
    a("v_lshlrev_b32 v5, 3, v1"); a("v_cvt_f32_u32 v24, v5")
    a("v_and_b32 v5, 7, v1"); a("v_lshrrev_b32 v6, 3, v1"); a("v_lshl_add_u32 v5, v6, 7, v5"); a("v_cvt_f32_u32 v25, v5")
    a("v_lshrrev_b32 v5, 2, v1"); a("v_lshlrev_b32 v5, 7, v5"); a("v_and_b32 v6, 3, v1"); a("v_lshl_add_u32 v5, v6, 1, v5"); a("v_add_u32 v5, 0x100, v5")
    a("v_subrev_u32 v6, 8, v1"); a("v_lshrrev_b32 v7, 1, v6"); a("v_lshlrev_b32 v7, 7, v7"); a("v_and_b32 v6, 1, v6"); a("v_lshl_add_u32 v7, v6, 2, v7"); a("v_add_u32 v7, 0x200, v7")
    a("v_cmp_gt_u32 vcc, 8, v1"); a("v_cndmask_b32 v5, v7, v5, vcc"); a("v_cvt_f32_u32 v26, v5")
    a("v_lshlrev_b32 v5, 7, v1"); a("v_add_u32 v5, 0x400, v5"); a("v_cvt_f32_u32 v27, v5")
    a("v_mul_u32_u24 v28, 3200, v3"); a(f"v_add_u32 v28, {KTAB}, v28")
    a("v_and_b32 v5, 1, v2"); a("v_lshlrev_b32 v5, 2, v5"); a("v_lshrrev_b32 v6, 1, v2"); a("v_lshl_add_u32 v5, v6, 7, v5"); a("v_lshl_add_u32 v29, v1, 3, v5")
    a("v_lshlrev_b32 v5, 6, v2"); a("v_lshl_add_u32 v6, v1, 2, v5"); a("v_add_u32 v6, 256, v6"); a("v_lshl_add_u32 v7, v1, 1, v5"); a("v_add_u32 v7, 256, v7")
    a("v_cmp_gt_u32 vcc, 2, v2"); a("v_cndmask_b32 v30, v7, v6, vcc")
    a("v_mov_b32 v6, 32"); a("v_cndmask_b32 v6, v6, 2, vcc"); a("v_add_u32 v31, v30, v6")
    a("v_add_u32 v6, v5, v1"); a("v_add_u32 v32, 512, v6")
    for k,(b,o) in enumerate([(29,0),(29,1),(29,2),(29,3),(30,0),(30,1),(31,0),(31,1),(32,0),(32,16),(32,32),(32,48)]):
        a(f"v_add_u32 v5, {o}, v{b}"); a("v_lshrrev_b32 v6, 5, v5"); a("v_add_u32 v5, v5, v6"); a(f"v_lshl_add_u32 v{50+k}, v5, 2, v28")
    a("v_lshlrev_b32 v5, 3, v0"); a("v_sub_u32 v5, 0x7ff, v5"); a("s_movk_i32 s67, 0xbd80"); a(f"s_mov_b32 s64, {KTAB}")
    for e in range(0,8,2):
        a(f"v_subrev_u32 v6, {e}, v5"); a(f"v_subrev_u32 v7, {e+1}, v5"); a("v_cvt_f32_u32 v72, v6"); a("v_cvt_f32_u32 v73, v7")
        a("v_cvt_pk_bf16_f32 v72, v72, v73"); a("v_lshrrev_b32 v73, 16, v72"); a("v_and_b32 v72, 0xffff, v72"); a("v_add_u32 v72, s67, v72"); a("v_add_u32 v73, s67, v73")
        a("v_cmp_gt_u32 vcc, 0x80, v6"); a("v_cndmask_b32 v72, v72, v6, vcc"); a("v_cmp_gt_u32 vcc, 0x80, v7"); a("v_cndmask_b32 v73, v73, v7, vcc")
        a("v_lshrrev_b32 v6, 5, v72"); a("v_add_u32 v72, v72, v6"); a("v_lshrrev_b32 v7, 5, v73"); a("v_add_u32 v73, v73, v7")
        a(f"v_lshl_add_u32 v{GI+e}, v72, 2, s64"); a(f"v_lshl_add_u32 v{GI+1+e}, v73, 2, s64")
    a("v_lshlrev_b32 v108, 4, v0"); a(f"v_add_u32 v108, {KR0}, v108")
def kgen(a,vq,dd,hooks={}):
    a("s_mov_b32 s77, 0x3fb8aa3b"); a("s_mov_b32 s78, 0xffff0000"); a("s_mov_b32 s79, 0x3e22f983")
    if dd==0: k_setup(a)
    for i in range(4): a(f"v_mov_b32 v{128+i}, 0")
    a("v_bfe_u32 v5, v0, 5, 1"); a(f"v_mul_u32_u24 v5, {KRB}, v5"); a("v_and_b32 v6, 31, v0"); a("v_lshl_add_u32 v5, v6, 4, v5"); a(f"v_add_u32 v5, {KR0+2*KRB*dd+4096}, v5")
    masked(a,"v_cmp_gt_u32 vcc, 64, v0",lambda: a("ds_write_b128 v5, v[128:131]"))
    a("s_waitcnt lgkmcnt(0)")
    a("s_lshl_b32 s3, s82, 16" if dd==0 else "s_and_b32 s3, s82, 0xffff0000")
    a("v_mov_b32 v33, s3"); a("v_mul_f32 v33, s77, v33"); a("v_exp_f32 v33, v33"); a("v_cvt_pk_bf16_f32 v33, v33, v33"); a("v_and_b32 v33, s78, v33"); a("v_add_f32 v34, v33, v33")
    A=38
    for i in range(12): a(f"v_mov_b32 v{A+i}, 0")
    def valu(n):
        P=208; q=n>>1; T=132+18*(n&3) if False else 132+22*(n&1)+0; D=33; o=[]
        T=120+22*(n&3) if False else [132,154,176,64][n&3]
        Q=200+4*n
        if PK:
            for k in (0,2): o+=[f"v_pk_mul_f32 v[{T+4+k}:{T+5+k}], v[{24+k}:{25+k}], v[{T}:{T+1}] op_sel:[0,0] op_sel_hi:[1,0] neg_lo:[0,1] neg_hi:[0,1]",
                                f"v_pk_mul_f32 v[{T+8+k}:{T+9+k}], v[{24+k}:{25+k}], v[{T}:{T+1}] op_sel:[0,1] op_sel_hi:[1,1]"]
        else:
            for k in range(4): o+=[f"v_mul_f32 v{T+4+k}, -v{Q}, v{24+k}", f"v_mul_f32 v{T+8+k}, v{Q+1}, v{24+k}"]
        for k in range(4): o+=[f"v_exp_f32 v{T+4+k}, v{T+4+k}", f"v_fract_f32 v{T+8+k}, v{T+8+k}"]
        for k in range(4): o+=[f"v_cos_f32 v{T+12+k}, v{T+8+k}", f"v_sin_f32 v{T+16+k}, v{T+8+k}"]
        if PK:
            for k in (0,2): o+=[f"v_pk_mul_f32 v[{T+12+k}:{T+13+k}], v[{T+12+k}:{T+13+k}], v[{T+4+k}:{T+5+k}]", f"v_pk_mul_f32 v[{T+16+k}:{T+17+k}], v[{T+16+k}:{T+17+k}], v[{T+4+k}:{T+5+k}]"]
        else:
            for k in range(4): o+=[f"v_mul_f32 v{T+12+k}, v{T+12+k}, v{T+4+k}", f"v_mul_f32 v{T+16+k}, v{T+16+k}, v{T+4+k}"]
        o+=[f"v_mul_f32 v{T+20}, v{Q+2}, v{T+12}", f"v_mul_f32 v{T+21}, -v{Q+2}, v{T+16}", f"v_fma_f32 v{T+20}, -v{Q+3}, v{T+16}, v{T+20}", f"v_fma_f32 v{T+21}, -v{Q+3}, v{T+12}, v{T+21}"]
        return o
    def mfmas(n):
        T=[132,154,176,64][n&3]
        return [f"v_mfma_f32_16x16x4_f32 {R(A+4*tau)}, v{T+13+4*part+tau}, v{T+20+part}, {R(A+4*tau)}" for part in range(2) for tau in range(3)]
    vq.wait_for(a,lambda t:t==("P",dd))
    P=240+4*dd
    for k in range(4): a(f"v_lshlrev_b32 v{88+k}, 16, v{P+k}")
    a("v_mul_f32 v88, s77, v88"); a("v_exp_f32 v88, v88"); a("v_mul_f32 v89, v89, v33"); a("v_mul_f32 v90, v90, v34"); a("v_cvt_pk_bf16_f32 v88, v88, v88"); a("v_and_b32 v88, s78, v88")
    a("v_mul_f32 v91, v91, v34"); a("v_mul_f32 v88, v88, v33"); a("v_mul_f32 v89, s79, v89"); a("v_mul_f32 v88, s77, v88")
    a("v_and_b32 v5, 31, v4"); a("v_lshlrev_b32 v5, 4, v5"); a("v_lshl_add_u32 v5, v3, 9, v5"); a(f"v_add_u32 v5, {KTAB+12800}, v5")
    a("ds_write_b128 v5, v[88:91]")
    a("v_lshlrev_b32 v6, 7, v2"); a("v_lshl_add_u32 v6, v3, 9, v6"); a(f"v_add_u32 v6, {KTAB+12800}, v6")
    a("s_waitcnt lgkmcnt(0)")
    for n in range(8): a(f"ds_read_b128 {R(200+4*n)}, v6 offset:{16*n}")
    a("s_waitcnt lgkmcnt(0)")
    pend=[]
    for n in range(0,8,2):
        if n in hooks: hooks[n]()
        o=[x for pr in zip(valu(n),valu(n+1)) for x in pr]
        for k,ins in enumerate(o):
            a(ins)
            if pend and k%8==4: a(pend.pop(0))
        while pend: a(pend.pop(0))
        pend=mfmas(n)+mfmas(n+1)
    while pend: a(pend.pop(0))
    for i in range(12): a(f"ds_write_b32 v{50+i}, v{A+i}")
    a("s_waitcnt lgkmcnt(0)"); a("s_barrier")
    B0=132
    for e in range(8):
        for w in range(4): a(f"ds_read_b32 v{B0+4*e+w}, v{GI+e} offset:{3200*w}")
    a("s_waitcnt lgkmcnt(0)")
    for e in range(8):
        b=B0+4*e; a(f"v_add_f32 v{b}, v{b}, v{b+1}"); a(f"v_add_f32 v{b+2}, v{b+2}, v{b+3}"); a(f"v_add_f32 v{b}, v{b}, v{b+2}")
    O=110
    for p in range(4):
        x0=B0+8*p; x1=x0+4
        a(f"v_cvt_pk_bf16_f32 v{O+p}, v{x0}, v{x1}"); a(f"v_lshlrev_b32 v{O+8}, 16, v{O+p}"); a(f"v_and_b32 v{O+9}, s78, v{O+p}")
        a(f"v_sub_f32 v{O+8}, v{x0}, v{O+8}"); a(f"v_sub_f32 v{O+9}, v{x1}, v{O+9}"); a(f"v_cvt_pk_bf16_f32 v{O+4+p}, v{O+8}, v{O+9}")
    a(f"ds_write_b128 v108, {R(O)} offset:{2*KRB*dd}"); a(f"ds_write_b128 v108, {R(O+4)} offset:{2*KRB*dd+KRB}")
    a("s_waitcnt lgkmcnt(0)"); a("s_barrier")
def conv_loads(a,vq):
    a(f"s_mul_i32 s3, s2, {2*XNT_STRIDE}"); a(f"s_movk_i32 s66, {XNT_STRIDE}")
    a("v_lshlrev_b32 v5, 4, v0"); a("v_add_u32 v6, s3, v5"); a("v_add_u32 v7, 4096, v6")
    def body():
        for dd,b in ((0,176),(1,248)):
            for q in range(2): a(f"buffer_load_dwordx4 {R(b+4*q)}, v7, {S4(XNT)}, {'s66' if dd else '0'} offen offset:{16*q}{SC}")
    masked(a,"v_cmp_gt_u32 vcc, 2, v0",body)
    for dd,b in ((0,168),(1,240)):
        for q in range(2): a(f"buffer_load_dwordx4 {R(b+4*q)}, v6, {S4(XNT)}, {'s66' if dd else '0'} offen offset:{16*q}{SC}"); vq.issue(("U",dd))
def conv(a,vq,dd,st_):
    a("v_lshlrev_b32 v5, 4, v0"); a("v_add_u32 v10, 4096, v5")
    def copies(base,vaddr):
        for s in range(8):
            q=s>>1
            if s&1:
                for k in range(4): a(f"v_alignbit_b32 v{16+4*s+k}, v{base+q+k+1}, v{base+q+k}, 16")
                src=16+4*s
            elif q&1:
                for k in range(4): a(f"v_mov_b32 v{16+4*s+k}, v{base+q+k}")
                src=16+4*s
            else: src=base+q
            a(f"ds_write_b128 v{vaddr}, {R(src)} offset:{s*CSTR+16*COFF[s]}")
    a("v_add_u32 v6, 1, v1"); a("v_and_b32 v7, 7, v6"); a(f"v_mul_u32_u24 v8, {CSTR}, v7")
    pk=sum(c<<(4*i) for i,c in enumerate(COFF)); a(f"s_mov_b32 s67, {pk}")
    a("v_lshlrev_b32 v9, 2, v7"); a("v_lshrrev_b32 v9, v9, s67"); a("v_and_b32 v9, 15, v9"); a("v_lshl_add_u32 v8, v9, 4, v8")
    a("v_and_b32 v6, 0x18, v6"); a("v_lshl_add_u32 v6, v2, 3, v6"); a("v_lshl_add_u32 v8, v6, 1, v8")
    a("s_lshl_b32 s64, s68, 7"); a("v_add_u32 v11, s64, v8")
    a("v_lshlrev_b32 v6, 5, v1"); a("v_lshlrev_b32 v7, 4, v2"); a("v_sub_u32 v6, v7, v6"); a(f"s_add_u32 s64, s64, {KR0+2*KRB*dd+2*2032-64*56}"); a("v_add_u32 v12, s64, v6")
    vq.wait_for(a,lambda t:t==("U",dd))
    copies((168,240)[dd],5); masked(a,"v_cmp_gt_u32 vcc, 2, v0",lambda: copies((176,248)[dd],10))
    ACB=208 if True else 0
    a("s_waitcnt lgkmcnt(0)"); a("s_barrier"); st_(a,f"cv{dd}")
    acc=lambda C: R(208+4*C)
    for i in range(32): a(f"v_mov_b32 v{208+i}, 0")
    RA=lambda st,i: R(16+96*st+4*i); RH=lambda st,i: R(48+96*st+4*i); RL=lambda st,i: R(80+96*st+4*i)
    def loads(st,b):
        out=[]
        for i in range(8): out+=[f"ds_read_b128 {RA(st,i)}, v11 offset:{512*i+64*b}", f"ds_read_b128 {RH(st,i)}, v12 offset:{64*(b-8*i+56)}", f"ds_read_b128 {RL(st,i)}, v12 offset:{64*(b-8*i+56)+KRB}"]
        return out
    for l in loads(0,0): a(l)
    for b in range(2):
        nxt=loads(1,1) if b==0 else []
        a("s_waitcnt lgkmcnt(0)"); k=0
        for C in range(8):
            for ap in range(C+1):
                m=C-ap
                a(f"v_mfma_f32_16x16x32_bf16 {acc(C)}, {RA(b,ap)}, {RH(b,m)}, {acc(C)}"); a(f"v_mfma_f32_16x16x32_bf16 {acc(C)}, {RA(b,ap)}, {RL(b,m)}, {acc(C)}")
                if nxt and k>=4: a(nxt.pop(0))
                k+=1
        while nxt: a(nxt.pop(0))
    a("v_lshlrev_b32 v5, 4, v4"); a("s_mul_i32 s64, s68, 6144"); a(f"s_add_u32 s64, s64, {XCH}"); a("v_add_u32 v6, s64, v5")
    Le=lab("CXE"); a("s_nop 7")
    for w in range(4):
        Lw=lab("CXW"); a(f"s_cmp_lg_u32 s68, {w}"); a(f"s_cbranch_scc1 {Lw}")
        for C in range(8):
            if C>>1==w: continue
            a(f"ds_write_b128 v6, {acc(C)} offset:{1024*((C-2*w-2)%8)}")
        for i in range(8): a(f"v_mov_b32 v{16+i}, v{208+8*w+i}")
        a(f"s_branch {Le}"); a(f"{Lw}:")
    a(f"{Le}:"); a("s_waitcnt lgkmcnt(0)"); a("s_barrier")
    for k in range(3):
        a(f"s_sub_u32 s64, s68, {k+1}"); a("s_and_b32 s64, s64, 3"); a("s_mul_i32 s64, s64, 6144"); a(f"s_add_u32 s64, s64, {XCH}"); a("v_add_u32 v7, s64, v5")
        for c in range(2): a(f"ds_read_b128 {R(24+8*k+4*c)}, v7 offset:{1024*(2*k+c)}")
    a("s_lshl_b32 s64, s68, 10"); a("v_lshlrev_b32 v8, 5, v1"); a("v_lshl_add_u32 v8, v2, 3, v8"); a("v_add_u32 v8, s64, v8"); a("v_add_u32 v9, s64, v5")
    a("s_lshl_b32 s3, s2, 13"); a(f"s_add_u32 s3, s3, {4096*dd}"); a("s_add_u32 s3, s3, s64"); a("v_add_u32 v10, s3, v5")
    a("s_waitcnt lgkmcnt(0)")
    for c in range(2):
        for k in range(4):
            b=16+4*c+k; a(f"v_add_f32 v{b}, v{b}, v{b+8}"); a(f"v_add_f32 v{b+16}, v{b+16}, v{b+24}"); a(f"v_add_f32 v{b}, v{b}, v{b+16}")
        a(f"v_cvt_pk_bf16_f32 v{48+2*c}, v{16+4*c}, v{17+4*c}"); a(f"v_cvt_pk_bf16_f32 v{49+2*c}, v{18+4*c}, v{19+4*c}")
        a(f"ds_write_b64 v8, {R(48+2*c,2)} offset:{512*c}")
    a("s_waitcnt lgkmcnt(0)"); a("ds_read_b128 v[52:55], v9"); a("s_waitcnt lgkmcnt(0)")
    a(f"buffer_store_dwordx4 v[52:55], v10, {S4(YT)}, 0 offen{SC}"); vq.issue(("S",2))
    a("s_barrier")
def role_s(a,st):
    vq=VmQ()
    s_loads(a,vq)
    SS=lambda i: a(f"s_memrealtime s[{84+2*i}:{85+2*i}]") if STAMPS else None
    SS(0); kgen(a,vq,0,{6:lambda:s_warm(a)}); SS(1)
    def hint_wait():
        a("s_lshl_b32 s64, s2, 2"); a(f"s_add_u32 s64, s64, {4*8192}"); a("v_mov_b32 v16, s64"); poll_issue(a,vq,16,20,("PG",0)); poll_check(a,vq,16,20,("PG",0))
    HP=os.environ.get("HINT","0")
    hk={0:lambda:token_issue(a,vq)}
    if HP in("k4","k6"): hk[int(HP[1])]=lambda:(token_get(a,vq),s_warm_wd(a),hint_wait())
    kgen(a,vq,1,hk); SS(2)
    if HP not in("k4","k6"): token_get(a,vq)
    xn_poll_addr(a,16,3); poll_issue(a,vq,16,20,("PX",0),4); poll_check(a,vq,16,20,("PX",0),4); SS(3)
    conv_loads(a,vq)
    if HP not in("k4","k6"): s_warm_wd(a)
    if HP=="1": hint_wait()
    conv(a,vq,0,lambda a,n:None); SS(4)
    conv(a,vq,1,lambda a,n:None); SS(5)
    signal(a,vq,2,("S",2)); SS(6)
    if STAMPS:
        a("s_load_dwordx2 s[4:5], s[0:1], 104"); a("s_waitcnt lgkmcnt(0) vmcnt(0)"); srd(a,52,4,5,1<<20,add=(48<<20)+65536)
        a("v_lshrrev_b32 v1, 6, v0"); a("s_lshl_b32 s3, s2, 8"); a("v_lshlrev_b32 v1, 6, v1"); a("v_add_u32 v1, s3, v1")
        for i in range(7): a(f"v_mov_b32 v2, s{84+2*i}"); a(f"buffer_store_dword v2, v1, s[52:55], 0 offen offset:{4*i}")
NAME=m8.NAME
def build():
    a=Asm(); st=St()
    a(f"{NAME}:"); a("s_cmp_ge_u32 s2, 512"); a("s_cbranch_scc1 K_END"); st(a,"start")
    setup(a)
    a("s_cmp_ge_u32 s81, 256"); a("s_cbranch_scc1 ROLE_S")
    role_f(a,st); st.dump(a); a("s_endpgm")
    a("ROLE_S:")
    if os.environ.get("NOS")=="1":
        vq=VmQ(); s_warm(a); s_warm_wd(a); token_issue(a,vq); a("s_sleep 100"); token_get(a,vq); signal(a,vq,2,("S",2))
    else: role_s(a,st)
    a("K_END:"); a("s_endpgm")
    return a.render()
if __name__=="__main__":
    HDR=open("parallel_sum__ssm_conv_s4d__swiglu_ffn__prompt.s.ref").read().split("; Override launch")[0]
    s=HDR+f"; @launch grid=(512,1,1) block=(256,1,1) lds={LDS}\n"+'.amdgcn_target "amdgcn-amd-amdhsa--gfx950"\n.text\n'+f".globl {NAME}\n.p2align 8\n.type {NAME},@function\n"+build()
    s+=f'''.section .rodata,"a"
.p2align 6
.amdhsa_kernel {NAME}
  .amdhsa_next_free_vgpr 256
  .amdhsa_next_free_sgpr 102
  .amdhsa_accum_offset 256
  .amdhsa_group_segment_fixed_size 0
  .amdhsa_kernarg_size 112
  .amdhsa_user_sgpr_count 2
  .amdhsa_user_sgpr_kernarg_segment_ptr 1
  .amdhsa_system_sgpr_workgroup_id_x 1
.end_amdhsa_kernel
'''
    open(sys.argv[1],"w").write(s)
```
